```python
import torch

def _softmax(x, axis=-1):
    return torch.softmax(x, dim=axis)
def _gelu(x):
    return torch.nn.functional.gelu(x, approximate="tanh")
def _silu(x):
    return torch.nn.functional.silu(x)
def _sigmoid(x):
    return torch.sigmoid(x)
def _layernorm(x, axis=-1, eps=1e-5):
    m = x.mean(dim=axis, keepdim=True)
    v = x.var(dim=axis, keepdim=True, unbiased=False)
    return (x - m) / torch.sqrt(v + eps)
def _scatter_add(tgt, idx, src, axis=0):
    return tgt.clone().index_add_(axis, idx, src)
def _segment_sum(src, seg, n):
    out = torch.zeros((n,) + src.shape[1:], dtype=src.dtype)
    return out.index_add_(0, seg, src)
def _pad(x, pw):
    flat = tuple(v for pair in reversed(pw) for v in pair)
    return torch.nn.functional.pad(x, flat)

kernel_name = 'interleave_layers__sliding_local_dilated__swiglu_ffn__prompt'

def setup_inputs():

    _w = (lambda a: (lambda t: t.to(torch.bfloat16) if t.is_floating_point() else t)(torch.as_tensor(a)))
    def _A_setup():
        B, S, D = 1, 2048, 448
        return {
            "x": _w((lambda *s: torch.randn(*s, dtype=torch.bfloat16) * 0.05)(B, S, D)),
            "wqkv": _w((lambda *s: torch.randn(*s, dtype=torch.bfloat16) * 0.05)(D, 3 * D)),
            "wo": _w((lambda *s: torch.randn(*s, dtype=torch.bfloat16) * 0.05)(D, D)),
        }
    _A_in = _A_setup()

    def _B_setup():
        B, S, D, F = 1, 2048, 448, 1792
        return {
            "x": _w((lambda *s: torch.randn(*s, dtype=torch.bfloat16) * 0.05)(B, S, D)),
            "w_gate": _w((lambda *s: torch.randn(*s, dtype=torch.bfloat16) * 0.05)(D, F)),
            "w_up": _w((lambda *s: torch.randn(*s, dtype=torch.bfloat16) * 0.05)(D, F)),
            "w_down": _w((lambda *s: torch.randn(*s, dtype=torch.bfloat16) * 0.05)(F, D)),
        }
    _B_in = _B_setup()

    return {
        "A_x": _A_in["x"],
        "A_wqkv": _A_in["wqkv"],
        "A_wo": _A_in["wo"],
        "B_x": _B_in["x"],
        "B_w_gate": _B_in["w_gate"],
        "B_w_up": _B_in["w_up"],
        "B_w_down": _B_in["w_down"],
    }

def reference(A_x, A_wqkv, A_wo, B_x, B_w_gate, B_w_up, B_w_down):
    def _A_ref(x, wqkv, wo):
        B, S, D = x.shape
        H = 16; Dh = D // H
        W, dil = 8, 2
        qkv = (lambda x, *d: x.permute(*d))((x @ wqkv).reshape(B, S, 3, H, Dh), 2, 0, 3, 1, 4)
        q, k, v = qkv[0], qkv[1], qkv[2]
        scale = Dh ** -0.5
        pos = torch.arange(S)
        off = torch.arange(W) * dil
        idx = pos[:, None] - off[None, :]
        mask = idx >= 0
        idx_c = torch.where(mask, idx, 0).reshape(-1)
        kg = k[:, :, idx_c, :].reshape(B, H, S, W, Dh)
        vg = v[:, :, idx_c, :].reshape(B, H, S, W, Dh)
        logits = torch.einsum("bhsd,bhswd->bhsw", q, kg) * scale
        logits = torch.where(mask[None, None, :, :], logits, -1e9)
        attn = _softmax(logits, axis=-1)
        o = torch.einsum("bhsw,bhswd->bhsd", attn, vg)
        return (lambda x, *d: x.permute(*d))(o, 0, 2, 1, 3).reshape(B, S, D) @ wo

    def _B_ref(x, w_gate, w_up, w_down):
        g = _silu(x @ w_gate)
        u = x @ w_up
        return (g * u) @ w_down

    x = A_x
    x = x + _A_ref(_layernorm(x, axis=-1), A_wqkv, A_wo)
    x = x + _B_ref(_layernorm(x, axis=-1), B_w_gate, B_w_up, B_w_down)
    x = x + _A_ref(_layernorm(x, axis=-1), A_wqkv, A_wo)
    x = x + _B_ref(_layernorm(x, axis=-1), B_w_gate, B_w_up, B_w_down)
    return x
```

```python
import re

REG_RE = re.compile(r"\b([vas])(\d+)\b|\b([vas])\[(\d+):(\d+)\]|\b(vcc|exec|m0|scc)\b")

def regs_of(tok):
    out = []
    for m in REG_RE.finditer(tok):
        if m.group(1):
            out.append(m.group(1) + m.group(2))
        elif m.group(3):
            for i in range(int(m.group(4)), int(m.group(5)) + 1):
                out.append(m.group(3) + str(i))
        else:
            out.append(m.group(6))
    return out

TRANS = ("v_exp_f32", "v_log_f32", "v_rcp_f32", "v_rsq_f32", "v_sqrt_f32", "v_sin_f32", "v_cos_f32")

class Inst:
    __slots__ = ("text", "op", "kind", "rd", "wr", "tag", "mc", "note", "passes", "nstates")
    def __init__(self, text, tag=None):
        self.text = text.strip()
        self.tag = tag
        self.mc = []
        self.passes = 0
        self.nstates = 1
        t = self.text
        if t.endswith(":"):
            self.op = "label"; self.kind = "label"; self.rd = []; self.wr = []; self.nstates = 0
            return
        if t.startswith(";") or t.startswith(".") or t == "":
            self.op = "comment"; self.kind = "comment"; self.rd = []; self.wr = []; self.nstates = 0
            return
        t = t.split(";")[0].strip()
        sp = t.split(None, 1)
        op = sp[0]
        self.op = op
        args = sp[1] if len(sp) > 1 else ""
        ops = [x.strip() for x in split_ops(args)]
        base = op[:-4] if op.endswith("_e32") or op.endswith("_e64") else op
        rd, wr = [], []
        if base.startswith("v_mfma"):
            self.kind = "mfma"
            wr = regs_of(ops[0]); rd = regs_of(ops[1]) + regs_of(ops[2]) + regs_of(ops[3])
            self.mc = regs_of(ops[3])
            self.passes = 8 if "32x32" in base else 4
        elif base.startswith("v_cmp"):
            self.kind = "valu"
            wr = regs_of(ops[0]); rd = sum((regs_of(o) for o in ops[1:]), [])
        elif base.startswith("v_permlane") and "swap" in base:
            self.kind = "valu"
            wr = regs_of(ops[0]) + regs_of(ops[1]); rd = list(wr)
        elif base in ("v_readfirstlane_b32", "v_readlane_b32"):
            self.kind = "valu"
            wr = regs_of(ops[0]); rd = sum((regs_of(o) for o in ops[1:]), [])
        elif base.startswith("v_"):
            self.kind = "trans" if base in TRANS else "valu"
            if base == "v_nop":
                pass
            else:
                wr = regs_of(ops[0]); rd = sum((regs_of(o) for o in ops[1:]), [])
                if base in ("v_add_co_u32", "v_sub_co_u32", "v_addc_co_u32"):
                    wr += regs_of(ops[1]); rd = sum((regs_of(o) for o in ops[2:]), [])
                if base.startswith("v_fmac") or base.startswith("v_dot2c") or base.startswith("v_pk_fmac"):
                    rd += wr
                if base == "v_cndmask_b32" and len(ops) == 3:
                    rd.append("vcc")
        elif base.startswith("buffer_load") or base.startswith("global_load"):
            if re.search(r"\blds\b", args):
                self.kind = "dma"
                rd = sum((regs_of(o) for o in ops), []) + ["m0"]
            else:
                self.kind = "vld"
                wr = regs_of(ops[0]); rd = sum((regs_of(o) for o in ops[1:]), [])
        elif base.startswith("buffer_store") or base.startswith("global_store") or base.startswith("buffer_atomic") or base.startswith("global_atomic"):
            self.kind = "vst"
            rd = sum((regs_of(o) for o in ops), [])
        elif base.startswith("buffer_wbl2") or base.startswith("buffer_inv"):
            self.kind = "vst"
        elif base.startswith("ds_read") or base.startswith("ds_bpermute") or base.startswith("ds_swizzle") or base.startswith("ds_permute"):
            self.kind = "dsr"
            wr = regs_of(ops[0]); rd = sum((regs_of(o) for o in ops[1:]), [])
        elif base.startswith("ds_write"):
            self.kind = "dsw"
            rd = sum((regs_of(o) for o in ops), [])
        elif base.startswith("s_load") or base in ("s_memtime", "s_memrealtime"):
            self.kind = "smem"
            wr = regs_of(ops[0]); rd = sum((regs_of(o) for o in ops[1:]), [])
        elif base == "s_waitcnt":
            self.kind = "wait"
        elif base == "s_nop":
            self.kind = "nop"; self.nstates = int(ops[0], 0) + 1
        elif base in ("s_barrier", "s_endpgm", "s_sleep", "s_setprio"):
            self.kind = "misc"
        elif base.startswith("s_cbranch") or base == "s_branch" or base.startswith("s_setpc") or base.startswith("s_swappc"):
            self.kind = "branch"
            rd = sum((regs_of(o) for o in ops), [])
            if "vcc" in base: rd.append("vcc")
            if "scc" in base: rd.append("scc")
            if "exec" in base: rd.append("exec")
        elif base.startswith("s_cmp") or base.startswith("s_bitcmp"):
            self.kind = "salu"
            wr = ["scc"]; rd = sum((regs_of(o) for o in ops), [])
        elif base.startswith("s_"):
            self.kind = "salu"
            wr = regs_of(ops[0]); rd = sum((regs_of(o) for o in ops[1:]), [])
            if "saveexec" in base:
                wr.append("exec"); rd.append("exec")
            if base.startswith("s_cselect") or base.startswith("s_addc"):
                rd.append("scc")
        else:
            raise ValueError("unknown instruction: " + text)
        self.rd = rd; self.wr = wr

def split_ops(args):
    out, depth, cur = [], 0, ""
    for ch in args:
        if ch in "[(":
            depth += 1
        if ch in "])":
            depth -= 1
        if ch == "," and depth == 0:
            out.append(cur); cur = ""
        else:
            cur += ch
    if cur.strip():
        out.append(cur)
    return out

def I(text, tag=None):
    return Inst(text, tag)

class WaitVM:
    kind = "pseudo_vm"
    def __init__(self, tag): self.tag = tag
class WaitLG:
    kind = "pseudo_lg"
    def __init__(self, tag): self.tag = tag
class Reset:
    kind = "pseudo_reset"

def tagmatch(have, want):
    if have == want: return True
    if isinstance(have, tuple) and not isinstance(want, tuple): return have[0] == want
    if isinstance(have, tuple) and isinstance(want, tuple): return have[:len(want)] == want
    return False

VM_KINDS = ("vld", "vst", "dma")
LG_KINDS = ("dsr", "dsw")

def finalize(prog, check_only=False):
    out = []
    vm = []
    lg = []
    smem_out = []
    state = 0
    last_valu_w = {}
    last_trans_w = {}
    last_mfma_w = {}
    last_mfma_c = {}
    last_salu_m0 = -100
    last_wide_st = {}
    last_dot_w = {}
    last_valu_exec = -100

    def emit(inst):
        nonlocal state
        out.append(inst)
        state += inst.nstates

    def wait(vmn=None, lgn=None):
        nonlocal vm, lg, smem_out
        parts = []
        if vmn is not None:
            parts.append("vmcnt(%d)" % vmn)
            vm = vm[len(vm) - vmn:] if vmn else []
        if lgn is not None:
            parts.append("lgkmcnt(%d)" % lgn)
            lg = lg[len(lg) - lgn:] if lgn else []
            if lgn == 0: smem_out = []
        emit(Inst("s_waitcnt " + " ".join(parts)))

    for p in prog:
        k = p.kind
        if k == "pseudo_reset":
            vm, lg, smem_out = [], [], []
            continue
        if k == "pseudo_vm":
            idx = [i for i, x in enumerate(vm) if tagmatch(x.tag, p.tag)]
            if idx:
                n = len(vm) - 1 - idx[-1]
                wait(vmn=min(n, 63))
            continue
        if k == "pseudo_lg":
            idx = [i for i, x in enumerate(lg) if tagmatch(x.tag, p.tag)]
            if idx:
                n = len(lg) - 1 - idx[-1]
                if smem_out: n = 0
                wait(lgn=min(n, 15))
            continue
        if k in ("label", "comment"):
            out.append(p); continue
        if k == "wait":
            m = re.search(r"vmcnt\((\d+)\)", p.text)
            if m:
                n = int(m.group(1)); vm = vm[len(vm) - n:] if (n and n < len(vm)) else ([] if n == 0 else vm)
            m = re.search(r"lgkmcnt\((\d+)\)", p.text)
            if m:
                n = int(m.group(1)); lg = lg[len(lg) - n:] if (n and n < len(lg)) else ([] if n == 0 else lg)
                if n == 0: smem_out = []
            emit(p); continue
        touched = set(p.rd) | set(p.wr)
        vmn = lgn = None
        for i in range(len(vm) - 1, -1, -1):
            x = vm[i]
            if x.kind == "vld" and touched.intersection(x.wr):
                if p.kind == "vld" and not set(p.rd).intersection(x.wr):
                    continue
                vmn = len(vm) - 1 - i
                break
        for i in range(len(lg) - 1, -1, -1):
            x = lg[i]
            if x.kind == "dsr" and touched.intersection(x.wr):
                if p.kind == "dsr" and not set(p.rd).intersection(x.wr):
                    continue
                lgn = len(lg) - 1 - i
                break
        for x in smem_out:
            if touched.intersection(x.wr):
                lgn = 0
        if lgn is not None and smem_out:
            lgn = 0
        if vmn is not None and vmn > 63: vmn = 63
        if lgn is not None and lgn > 15: lgn = 15
        if vmn is not None or lgn is not None:
            wait(vmn, lgn)
        need = 0
        def req(t0, n):
            nonlocal need
            gap = state - t0 - 1
            if gap < n: need = max(need, n - gap)
        isv = k in ("valu", "trans")
        if k == "mfma":
            for r in p.rd:
                if r in last_valu_w: req(last_valu_w[r], 2)
                if r in last_dot_w: req(last_dot_w[r][0], 3)
            ab = [r for r in p.rd if r not in p.mc]
            for r in ab:
                if r in last_mfma_w:
                    t0, q = last_mfma_w[r]; req(t0, 12 if q.passes == 8 else 8)
            for r in p.mc:
                if r in last_mfma_w:
                    t0, q = last_mfma_w[r]
                    if q.wr == p.mc and q.passes == p.passes: pass
                    else: req(t0, 10 if q.passes == 8 else 6)
            for r in p.wr:
                if r in last_mfma_w and r not in p.mc:
                    t0, q = last_mfma_w[r]; req(t0, 10 if q.passes == 8 else 6)
            req(last_valu_exec, 4)
        if isv or k in ("vld", "vst", "dma", "dsr", "dsw"):
            for r in touched:
                if r in last_mfma_w:
                    t0, q = last_mfma_w[r]; req(t0, 12 if q.passes == 8 else 8)
                if r in last_dot_w:
                    t0, q = last_dot_w[r]
                    same = isv and q.op == p.op
                    if same and (r in p.wr) and p.rd.count(r) <= 1: pass
                    else: req(t0, 3)
        if isv:
            for r in p.wr:
                if r in last_mfma_c:
                    t0, ps = last_mfma_c[r]; req(t0, 7 if ps == 8 else 3)
                if r in last_wide_st: req(last_wide_st[r], 2)
            for r in p.rd:
                if k == "valu" and r in last_trans_w: req(last_trans_w[r], 1)
                if (r[0] == "s" and r != "scc" or r == "vcc") and r in last_valu_w: req(last_valu_w[r], 2)
            if p.op.startswith("v_permlane") or "dpp" in p.text or "row_" in p.text:
                for r in p.rd:
                    if r in last_valu_w: req(last_valu_w[r], 2)
            if p.op.startswith("v_readfirstlane") or p.op.startswith("v_readlane"):
                for r in p.rd:
                    if r in last_valu_w: req(last_valu_w[r], 1 if r[0] == "v" else 4)
        if k in ("vld", "dsr"):
            for r in p.wr:
                if r in last_wide_st: req(last_wide_st[r], 1)
                if r in last_mfma_c:
                    t0, ps = last_mfma_c[r]; req(t0, 7 if ps == 8 else 3)
        if k in ("vld", "vst", "dma"):
            for r in p.rd:
                if r[0] == "s" and r in last_valu_w: req(last_valu_w[r], 5)
            for r in p.rd:
                if r in last_trans_w: req(last_trans_w[r], 1)
        if k in ("dsr", "dsw"):
            for r in p.rd:
                if r in last_trans_w: req(last_trans_w[r], 1)
        if k == "dma":
            req(last_salu_m0, 1)
        if k in ("salu", "branch"):
            for r in p.rd:
                if (r[0] == "s" and r != "scc") and r in last_valu_w: req(last_valu_w[r], 2)
        while need > 0:
            n = min(need, 16)
            emit(Inst("s_nop %d" % (n - 1)))
            need -= n
        t = state
        emit(p)
        for r in p.wr:
            last_valu_w.pop(r, None); last_trans_w.pop(r, None); last_mfma_w.pop(r, None); last_dot_w.pop(r, None)
        if isv:
            for r in p.wr: last_valu_w[r] = t
            if k == "trans":
                for r in p.wr: last_trans_w[r] = t
            if p.op.startswith("v_dot"):
                for r in p.wr: last_dot_w[r] = (t, p)
            if "exec" in p.wr: last_valu_exec = t
        if k == "mfma":
            for r in p.wr: last_mfma_w[r] = (t, p)
            for r in p.mc: last_mfma_c[r] = (t, p.passes)
        if k == "salu" and "m0" in p.wr: last_salu_m0 = t
        if k == "vst" and ("x4" in p.op or "x3" in p.op):
            data = regs_of(split_ops(p.text.split(None, 1)[1])[0 if p.op.startswith("buffer") else 1])
            for r in data: last_wide_st[r] = t
        if k in VM_KINDS:
            vm.append(p)
        if k in LG_KINDS:
            lg.append(p)
        if k == "smem": smem_out.append(p)
    lines = []
    for x in out:
        if x.kind == "label": lines.append(x.text)
        elif x.kind == "comment": lines.append(x.text if x.text.startswith(".") else "    " + x.text)
        else: lines.append("    " + x.text)
    return lines

def v(i, n=1): return "v%d" % i if n == 1 else "v[%d:%d]" % (i, i + n - 1)
def a(i, n=1): return "a%d" % i if n == 1 else "a[%d:%d]" % (i, i + n - 1)
def s(i, n=1): return "s%d" % i if n == 1 else "s[%d:%d]" % (i, i + n - 1)

class Prog(list):
    _uid = [0]
    def __init__(self, *a):
        super().__init__(*a); self.tail = []
    def i(self, text, tag=None):
        self.append(Inst(text, tag)); return self
    def c(self, text):
        self.append(Inst("; " + text))
    def label(self, name):
        self.append(Inst(name + ":"))
    def newlabel(self, base="L"):
        Prog._uid[0] += 1
        return "%s_%d" % (base, Prog._uid[0])
    def waitvm(self, tag): self.append(WaitVM(tag))
    def waitlg(self, tag): self.append(WaitLG(tag))
    def reset(self): self.append(Reset())

def cost_of(x):
    if isinstance(x, (list, tuple)): return sum(cost_of(y) for y in x)
    k = x.kind
    if k in ("label", "comment", "pseudo_reset"): return 0
    if k == "trans": return 8
    if k == "dma": return 16
    if k == "vld": return 8
    if k == "vst": return 12
    if k == "dsw": return 8
    if k == "valu" and x.op.startswith("v_dot"): return 8
    if k == "valu" and x.op.startswith("v_pk_"): return 12
    return 4

class Weave:
    def __init__(self, budget=24):
        self.mf = []; self.pre = {}; self.pin = {}; self.streams = []; self.budget = budget
    def mfma(self, text):
        self.mf.append(Inst(text)); return len(self.mf) - 1
    def n(self): return len(self.mf)
    def addpre(self, g, *xs): self.pre.setdefault(g, []).extend(self._cv(x) for x in xs)
    def addpin(self, g, *xs): self.pin.setdefault(max(g, -1), []).extend(self._cv(x) for x in xs)
    def _cv(self, x):
        if isinstance(x, str): return Inst(x)
        if isinstance(x, (list, tuple)): return [self._cv(y) for y in x]
        return x
    def mk(self, items, earliest=0, deadline=10**9, every=0):
        st = []
        for i, it in enumerate(items):
            e = earliest + i * every
            if isinstance(it, tuple) and isinstance(it[0], int):
                e, it = max(e, it[0]), it[1]
            st.append([e, deadline, self._cv(it)])
        return st
    def stream(self, items, earliest=0, deadline=10**9, every=0, prio=False):
        self.chain([self.mk(items, earliest, deadline, every)], prio)
    def chain(self, parts, prio=False):
        st = [x for p in parts for x in p]
        for i in range(len(st) - 2, -1, -1): st[i][1] = min(st[i][1], st[i + 1][1])
        for x in st: assert x[0] <= x[1], ("earliest after deadline", x[0], x[1], getattr(x[2], "text", x[2]))
        if prio: self.streams.insert(0, st)
        else: self.streams.append(st)
    def emit(self, P):
        def put(x):
            if isinstance(x, list):
                for y in x: put(y)
            else: P.append(x)
        for x in self.pin.get(-1, []): put(x)
        N = len(self.mf)
        self.over = 0
        for g in range(N):
            for x in self.pre.get(g, []): put(x)
            P.append(self.mf[g])
            left = self.budget - cost_of(self.pin.get(g, [])) - cost_of(self.pre.get(g + 1, []))
            for x in self.pin.get(g, []): put(x)
            for q in self.streams:
                while q and q[0][0] <= g:
                    c = cost_of(q[0][2])
                    if q[0][1] <= g or c <= left or (c > self.budget - 8 and left >= self.budget - 8):
                        put(q.pop(0)[2]); left -= c
                    else: break
            if left < 0: self.over -= left
        for x in self.pre.get(N, []): put(x)
        for q in self.streams:
            for e, d, x in q: put(x); self.over += cost_of(x)

import subprocess, tempfile, os
def inst_sizes(lines):
    src = []
    idx = []
    for i, l in enumerate(lines):
        t = l.strip()
        if not t or t.startswith(";") or t.startswith(".") or t.endswith(":"): continue
        op = t.split()[0]
        if op.startswith("s_cbranch") or op == "s_branch": t = op + " 0"
        elif re.search(r"\bL[A-Za-z_]\w*|_kernel", t): t = re.sub(r",[^,]*$", ", 0x12345678", t)
        src.append(t); idx.append(i)
    r = subprocess.run(["llvm-mc", "-triple=amdgcn-amd-amdhsa", "-mcpu=gfx950", "-show-encoding"],
                       input="\n".join(src) + "\n", capture_output=True, text=True)
    if r.returncode != 0:
        print(r.stderr[:3000]); raise SystemExit(1)
    enc = re.findall(r"encoding: \[([^\]]*)\]", r.stdout)
    assert len(enc) == len(src), (len(enc), len(src))
    sz = [0] * len(lines)
    for i, e in zip(idx, enc): sz[i] = len(e.split(","))
    return sz

NO_E64 = ("v_readfirstlane", "v_permlane", "v_nop", "v_fmaak", "v_fmamk", "v_madak", "v_madmk", "v_accvgpr", "v_dot2c")
def align8(lines):
    sz = inst_sizes(lines)
    out = []; osz = []
    off = 0
    npad = nprom = 0
    for l, n in zip(lines, sz):
        if l.endswith(":") and off % 8 == 4 and not l.startswith(" ") and not l.startswith("Lpc"):
            n_next = 8
        else:
            n_next = n
        if n_next >= 8 and off % 8 == 4:
            k = len(out) - 1
            done = False
            while k >= 0 and osz[k] in (0, 4):
                if osz[k] == 4:
                    t = out[k].strip(); op = t.split()[0]
                    if op.startswith("v_") and not op.endswith("_e64") and not op.startswith(NO_E64) and "dpp" not in t:
                        o2 = off - sum(osz[k:])
                        if o2 % 8 == 0:
                            op2 = (op[:-4] if op.endswith("_e32") else op) + "_e64"
                            out[k] = "    " + op2 + t[len(op):]; osz[k] = 8; off += 4; done = True; nprom += 1
                            break
                k -= 1
            if not done:
                out.append("    s_nop 0"); osz.append(4); off += 4; npad += 1
        out.append(l); osz.append(n); off += n
    return out, off, npad, nprom

def kernel_text(name, prog, align=True):
    L = [".text", ".globl %s" % name, ".p2align 8", ".type %s,@function" % name, "%s:" % name]
    body = finalize(prog)
    for t in getattr(prog, "tail", []):
        body += finalize(t)
    if align:
        body, nb, npad, nprom = align8(body)
        print("%s: %d bytes, %d pads, %d promoted" % (name[-24:], nb, npad, nprom))
    return L + body

def kernel_desc(name, vgpr, sgpr, accum_offset, kernarg=80):
    return ['.section .rodata,"a"', ".p2align 6", ".amdhsa_kernel %s" % name,
            "  .amdhsa_next_free_vgpr %d" % vgpr, "  .amdhsa_next_free_sgpr %d" % sgpr,
            "  .amdhsa_accum_offset %d" % accum_offset, "  .amdhsa_group_segment_fixed_size 0",
            "  .amdhsa_kernarg_size %d" % kernarg, "  .amdhsa_user_sgpr_count 2",
            "  .amdhsa_user_sgpr_kernarg_segment_ptr 1", "  .amdhsa_system_sgpr_workgroup_id_x 1",
            ".end_amdhsa_kernel"]
```

```python
from fw import *
from layout import *

MF = "v_mfma_f32_32x32x16_bf16"
WS, OUT, CODE = 4, 8, 12
sW, sJ, sGB, sGP, sGN, sMode, sBud, sFirst = 24, 25, 26, 27, 28, 29, 30, 31
sQ = [32, 33, 34, 35]
sXt = 36
sSt = 37
sW1, sW3, sW2, sW4 = 38, 39, 40, 42
sOz = 44
sHz = 46
sXo, sSo = 48, 49
sXH, sXHS = 50, 51
sOutO = 52
sPerm = 53
sXcc = 54
sLW = 55
sLW2 = 56
sHp = 57
sOp = 58
sG = 59
sONES = 23
sT = list(range(60, 84))
vL16, vST, vT8, vHX, vHS, vNEG, vSTAMP = 1, 2, 3, 4, 5, 6, 7
POI = 8
RES = 12
XM = 20
vRSTD, vVAR, vC, vCHK, vWA0, vWA1, vT0, vT1 = 24, 25, 26, 27, 28, 29, 30, 31
vL4 = 0
X = 32
ACC = [144 + 16 * i for i in range(5)]
T = 224
RING = 224
SLOT = 29696
MISC = 5 * SLOT
L_KX = MISC
L_VX = MISC + 4096
L_DUM = MISC + 9216
L_RS = MISC + 12288
LOG2E = 1.4426950408889634
import struct
def f2u(x): return struct.unpack("<I", struct.pack("<f", x))[0]

def ld(dst, n, voff, soff, off=0, sc1=False, agpr=False):
    op = {1: "dword", 2: "dwordx2", 4: "dwordx4"}[n]
    d = a(dst, n) if agpr else v(dst, n)
    return "buffer_load_%s %s, v%d, %s, s%d offen%s%s" % (op, d, voff, s(WS, 4), soff, " offset:%d" % off if off else "", " sc1" if sc1 else "")
def st(src, n, voff, soff, off=0, sc1=False, srd=WS):
    op = {1: "dword", 2: "dwordx2", 4: "dwordx4"}[n]
    return "buffer_store_%s %s, v%d, %s, s%d offen%s%s" % (op, v(src, n), voff, s(srd, 4), soff, " offset:%d" % off if off else "", " sc1" if sc1 else "")
def dma(voff, soff, off=0, n=4):
    op = {1: "dword", 4: "dwordx4"}[n]
    return "buffer_load_%s v%d, %s, s%d offen%s lds" % (op, voff, s(WS, 4), soff, " offset:%d" % off if off else "")

class Gen:
    def __init__(self, main_label, stop=99, stamps=False, opts=None):
        self.P = Prog()
        self.stop = stop
        self.stamps = stamps
        self.nstamp = 0
        self.main_label = main_label
        self.o = opts or {}
        self.tmpi = 0
        self.names = []

    def tmp(self):
        self.tmpi = (self.tmpi + 1) % 24
        return sT[self.tmpi]

    def stamp(self, name):
        if not self.stamps: return
        P = self.P
        P.i("s_memtime s[98:99]")
        P.i("s_waitcnt lgkmcnt(0)")
        P.i("v_writelane_b32 v%d, s98, %d" % (vSTAMP, self.nstamp))
        self.names.append(name)
        self.nstamp += 1

    def loads(self, specs, sc1, tag=None, agpr=False):
        out = []
        cur = None
        t = None
        for (dst, n, voff, sb, c) in specs:
            g = []
            key = (sb, c // 4096)
            if c < 4096:
                so = sb
            else:
                if cur is None or cur[0] != key:
                    if t is None: t = self.tmp()
                    g.append(Inst("s_add_u32 s%d, s%d, 0x%x" % (t, sb, (c // 4096) * 4096)))
                    cur = (key, t)
                so = cur[1]
            g.append(Inst(ld(dst, n, voff, so, c % 4096, sc1, agpr), tag))
            out.append(g)
        return out

    def chk_ops(self, regs):
        ops = []
        regs = list(regs)
        first = regs[:3]; rest = regs[3:]
        if len(first) == 3: ops.append("v_max3_u32 v%d, v%d, v%d, v%d" % (vCHK, *first))
        elif len(first) == 2: ops.append("v_max_u32 v%d, v%d, v%d" % (vCHK, *first))
        else: ops.append("v_mov_b32 v%d, v%d" % (vCHK, first[0]))
        while rest:
            if len(rest) >= 2:
                ops.append("v_max3_u32 v%d, v%d, v%d, v%d" % (vCHK, vCHK, rest[0], rest[1])); rest = rest[2:]
            else:
                ops.append("v_max_u32 v%d, v%d, v%d" % (vCHK, vCHK, rest[0])); rest = []
        return ops

    def check(self, specs):
        regs = []
        for (dst, n, voff, sb, c) in specs: regs += range(dst, dst + n)
        ops = self.chk_ops(regs)
        Lre = self.P.newlabel("Lre"); Lc = self.P.newlabel("Lc")
        fin = [Inst("v_cmp_eq_u32 vcc, -1, v%d" % vCHK), Inst("s_cbranch_vccnz %s" % Lre), Inst(Lc + ":")]
        R = Prog()
        R.label(Lre)
        R.i("s_cmp_eq_u32 s%d, 0" % sBud)
        R.i("s_cbranch_scc1 %s" % Lc)
        R.i("s_sub_u32 s%d, s%d, 1" % (sBud, sBud))
        cur = None
        for (dst, n, voff, sb, c) in specs:
            key = (sb, c // 4096)
            if cur != key:
                R.i("s_add_u32 s97, s%d, 0x%x" % (sb, (c // 4096) * 4096)); cur = key
            R.i(ld(dst, n, voff, 97, c % 4096, True))
        R.i("s_waitcnt vmcnt(0)")
        for o in ops: R.i(o)
        R.i("v_cmp_eq_u32 vcc, -1, v%d" % vCHK)
        R.i("s_cbranch_vccnz %s" % Lre)
        R.i("s_branch %s" % Lc)
        self.P.tail.append(R)
        return ops, fin

    def publish(self, stores, tag=None):
        Ls = self.P.newlabel("Lsl"); Lb = self.P.newlabel("Lb")
        g = [Inst("s_cmp_lg_u32 s%d, 0" % sMode), Inst("s_cbranch_scc1 %s" % Ls)]
        R = Prog(); R.label(Ls)
        R.i("s_nop 7"); R.i("s_nop 3")
        for x in stores:
            g.append(Inst(st(*x), tag))
            R.i(st(*x, sc1=True))
        R.i("s_nop 1")
        R.i("s_branch %s" % Lb)
        g.append(Inst(Lb + ":"))
        self.P.tail.append(R)
        return g

    def put(self, xs):
        for x in xs:
            if isinstance(x, (list, tuple)): self.put(x)
            elif isinstance(x, str): self.P.i(x)
            else: self.P.append(x)

    def tile_dma(self, sbase, const, slot, tag):
        t = self.tmp(); t2 = self.tmp()
        G = []
        for f in range(7):
            g = []
            if f % 4 == 0:
                g.append(Inst("s_add_u32 s%d, s%d, 0x%x" % (t, sbase, const + f * 1024)))
                g.append(Inst("s_add_u32 m0, s%d, 0x%x" % (sLW, slot * SLOT + f * 1024)))
                g.append(Inst("s_nop 0"))
            g.append(Inst(dma(vL16, t, (f % 4) * 1024), tag))
            G.append(g)
        G.append([Inst("s_sub_u32 s%d, s%d, s%d" % (t2, sbase, sLW)),
                  Inst("s_add_u32 s%d, s%d, s%d" % (t2, t2, sLW2)),
                  Inst("s_add_u32 m0, s%d, 0x%x" % (sLW2, slot * SLOT + 28672)),
                  Inst("s_add_u32 s%d, s%d, 0x%x" % (t2, t2, const + 28672)),
                  Inst(dma(vL4, t2, 0, 1), tag)])
        return G

    def stats_ops(self, SR, xm, rstd, var=None, qmask=None):
        o = []
        o.append("v_add_f32 v%d, v%d, v%d" % (SR, SR, SR + 2))
        o.append("v_add_f32 v%d, v%d, v%d" % (SR + 1, SR + 1, SR + 3))
        o.append("v_add_f32 v%d, v%d, v%d" % (SR + 4, SR + 4, SR + 6))
        o.append("v_add_f32 v%d, v%d, v%d" % (SR + 5, SR + 5, SR + 7))
        o.append("v_add_f32 v%d, v%d, v%d" % (SR + 8, SR + 8, SR + 10))
        o.append("v_add_f32 v%d, v%d, v%d" % (SR + 9, SR + 9, SR + 11))
        o.append("v_add_f32 v%d, v%d, v%d" % (SR, SR, SR + 4))
        o.append("v_add_f32 v%d, v%d, v%d" % (SR + 1, SR + 1, SR + 5))
        o.append("v_add_f32 v%d, v%d, v%d" % (SR + 8, SR + 8, SR + 12))
        o.append("v_add_f32 v%d, v%d, v%d" % (SR + 9, SR + 9, SR + 13))
        o.append("v_add_f32 v%d, v%d, v%d" % (SR, SR, SR + 8))
        o.append("v_add_f32 v%d, v%d, v%d" % (SR + 1, SR + 1, SR + 9))
        o.append("v_mov_b32 v%d, v%d" % (SR + 2, SR))
        o.append("v_mov_b32 v%d, v%d" % (SR + 3, SR + 1))
        o.append("s_nop 0")
        o.append("v_permlane32_swap_b32 v%d, v%d" % (SR, SR + 2))
        o.append("v_permlane32_swap_b32 v%d, v%d" % (SR + 1, SR + 3))
        o.append("v_add_f32 v%d, v%d, v%d" % (SR, SR, SR + 2))
        o.append("v_add_f32 v%d, v%d, v%d" % (SR + 1, SR + 1, SR + 3))
        o.append("v_mul_f32 v%d, 0x%x, v%d" % (SR, f2u(-1.0 / 448), SR))
        o.append("v_mov_b32 v%d, 0x%x" % (SR + 2, f2u(1e-5)))
        o.append("v_fmac_f32 v%d, 0x%x, v%d" % (SR + 2, f2u(1.0 / 448), SR + 1))
        vv = var if var is not None else SR + 3
        o.append("v_fma_f32 v%d, -v%d, v%d, v%d" % (vv, SR, SR, SR + 2))
        o.append("v_max_f32 v%d, 0x%x, v%d" % (vv, f2u(1e-5), vv))
        o.append("v_cvt_pk_bf16_f32 v%d, v%d, v%d" % (xm, SR, SR))
        o.append("v_rsq_f32 v%d, v%d" % (rstd, vv))
        o.append("v_and_b32 v%d, 0xffff0000, v%d" % (SR + 4, xm))
        o.append("v_sub_f32 v%d, v%d, v%d" % (SR + 4, SR, SR + 4))
        o.append("v_cvt_pk_bf16_f32 v%d, v%d, v%d" % (xm + 1, SR + 4, SR + 4))
        if qmask is None:
            o.append("v_mov_b32 v%d, v%d" % (xm + 2, xm))
            o.append("v_mov_b32 v%d, v%d" % (xm + 3, xm + 1))
        else:
            m0_, m1_ = qmask
            o.append("v_cndmask_b32_e64 v%d, 0, v%d, %s" % (xm + 2, xm, s(m1_, 2)))
            o.append("v_cndmask_b32_e64 v%d, 0, v%d, %s" % (xm + 3, xm + 1, s(m1_, 2)))
            o.append("v_cndmask_b32_e64 v%d, 0, v%d, %s" % (xm, xm, s(m0_, 2)))
            o.append("v_cndmask_b32_e64 v%d, 0, v%d, %s" % (xm + 1, xm + 1, s(m0_, 2)))
        return o

    def prologue(self):
        P = self.P
        P.i("s_load_dwordx2 s[16:17], s[0:1], 56")
        P.i("s_load_dwordx2 s[20:21], s[0:1], 72")
        self.Lend = P.newlabel("Lend"); self.Lfin = P.newlabel("Lfin")
        P.i("s_cmp_ge_u32 s2, 256")
        P.i("s_cbranch_scc1 %s" % self.Lend)
        P.i("v_lshrrev_b32 v30, 6, v0")
        P.i("v_and_b32 v31, 63, v0")
        P.i("v_readfirstlane_b32 s%d, v30" % sW)
        P.i("v_lshlrev_b32 v%d, 4, v31" % vL16)
        P.i("v_lshlrev_b32 v%d, 2, v31" % vL4)
        P.i("s_bfe_u32 s%d, s2, 0x40003" % sJ)
        P.i("s_and_b32 s59, s2, 7")
        P.i("s_lshl_b32 s59, s59, 1")
        P.i("s_lshr_b32 s61, s2, 7")
        P.i("s_add_u32 s59, s59, s61")
        P.i("s_lshl_b32 s%d, s59, 21" % sGB)
        P.i("s_add_u32 s%d, s%d, 0x%x" % (sGB, sGB, GRP_OFF))
        P.i("s_mul_i32 s%d, s%d, 7168" % (sLW, sW))
        P.i("s_mul_i32 s%d, s%d, %d" % (sW1, sJ, 87 * 1024))
        if W1_OFF: P.i("s_add_u32 s%d, s%d, 0x%x" % (sW1, sW1, W1_OFF))
        P.i("s_mul_i32 s%d, s%d, 28672" % (sXt, sW))
        P.i("s_add_u32 s%d, s%d, s%d" % (sXt, sXt, sGB))
        for q in range(4):
            P.i("s_add_u32 s61, s%d, %d" % (sW, q))
            P.i("s_and_b32 s61, s61, 3")
            P.i("s_mul_i32 s%d, s61, 7168" % sQ[q])
        P.i("s_waitcnt lgkmcnt(0)")
        P.i("s_mov_b32 s%d, s20" % WS)
        P.i("s_and_b32 s%d, s21, 0xffff" % (WS + 1))
        P.i("s_mov_b32 s%d, 0x%x" % (WS + 2, WS_BYTES))
        P.i("s_mov_b32 s%d, 0x00020000" % (WS + 3))

    def prologue2(self):
        P = self.P
        P.i("s_mov_b32 s%d, s16" % OUT)
        P.i("s_and_b32 s%d, s17, 0xffff" % (OUT + 1))
        P.i("s_mov_b32 s%d, %d" % (OUT + 2, 2048 * 896))
        P.i("s_mov_b32 s%d, 0x00020000" % (OUT + 3))
        P.i("s_getpc_b64 s[12:13]")
        Lpc = P.newlabel("Lpc"); P.label(Lpc)
        P.i("s_and_b32 s13, s13, 0xffff")
        P.i("s_mov_b32 s14, Lmain_end-%s" % Lpc)
        P.i("s_mov_b32 s15, 0x00020000")
        P.i("s_lshr_b32 s61, s2, 3")
        P.i("s_lshl_b32 s62, s%d, 5" % sW)
        P.i("s_add_u32 s61, s61, s62")
        P.i("s_lshl_b32 s61, s61, 10")
        P.i("buffer_load_dwordx4 %s, v%d, s[12:15], s61 offen" % (v(RES, 4), vL16), "code")
        P.i("s_getreg_b32 s%d, hwreg(HW_REG_XCC_ID)" % sXcc)
        P.i("s_and_b32 s%d, s%d, 15" % (sXcc, sXcc))
        P.i("s_and_b32 s61, s%d, 7" % sJ)
        P.i("s_lshl_b32 s61, s61, 3")
        P.i("s_lshr_b32 s62, s%d, 3" % sJ)
        P.i("s_lshl_b32 s62, s62, 8")
        P.i("s_add_u32 s61, s61, s62")
        P.i("s_add_u32 s61, s61, s%d" % sGB)
        P.i("s_add_u32 s61, s61, 0x%x" % (G_IDS + 192))
        P.i("v_mov_b32 v30, s%d" % sXcc)
        P.i("v_mov_b32 v%d, 0" % vT8)
        P.i(st(30, 1, vT8, 61, 0, True), "ids")
        P.i("v_and_b32 v30, 31, v31")
        P.i("v_lshlrev_b32 v%d, 3, v30" % vT8)
        P.i("v_mov_b32 v%d, 0xf149ffff" % vNEG)
        P.i("s_mov_b32 s%d, 0x3f803f80" % sONES)
        for r in range(4): P.i("v_mov_b32 v%d, -1" % (POI + r))
        P.i("s_mov_b32 s%d, 20000" % sBud)
        P.i("s_mov_b32 s%d, 0x05040100" % sPerm)
        P.i("s_lshl_b32 s%d, s%d, 8" % (sLW2, sW))
        P.i("s_add_u32 s61, s59, 1")
        P.i("s_and_b32 s61, s61, 7")
        P.i("s_and_b32 s62, s59, 8")
        P.i("s_or_b32 s61, s61, s62")
        P.i("s_lshl_b32 s%d, s61, 21" % sGN)
        P.i("s_add_u32 s%d, s%d, 0x%x" % (sGN, sGN, GRP_OFF))
        P.i("s_and_b32 s61, s59, 7")
        P.i("s_or_b32 s61, s61, s%d" % sW)
        P.i("s_cmp_eq_u32 s61, 0")
        P.i("s_cselect_b32 s%d, 0, -1" % sFirst)
        P.i("s_mul_i32 s%d, s%d, %d" % (sW3, sJ, 7 * SLOT))
        P.i("s_add_u32 s%d, s%d, s%d" % (sW3, sW3, sLW))
        P.i("s_add_u32 s%d, s%d, 0x%x" % (sW3, sW3, W3_OFF))
        P.i("s_mul_i32 s61, s%d, 112" % sW)
        P.i("s_mul_i32 s62, s%d, 7" % sJ)
        P.i("s_add_u32 s61, s61, s62")
        P.i("s_lshl_b32 s61, s61, 10")
        P.i("s_add_u32 s%d, s61, s%d" % (sHp, sGB))
        P.i("s_lshl_b32 s61, s%d, 5" % sW)
        P.i("s_lshl_b32 s62, s%d, 1" % sJ)
        P.i("s_add_u32 s61, s61, s62")
        P.i("s_lshl_b32 s61, s61, 10")
        P.i("s_add_u32 s%d, s61, s%d" % (sOp, sGB))
        P.i("s_and_b32 s61, s%d, 14" % sJ)
        P.i("s_and_b32 s62, s%d, 1" % sW)
        P.i("s_or_b32 s61, s61, s62")
        P.i("s_xor_b32 s62, s61, 1")
        P.i("s_and_b32 s63, s%d, 1" % sJ)
        P.i("s_lshl_b32 s63, s63, 1")
        P.i("s_lshr_b32 s64, s%d, 1" % sW)
        P.i("s_or_b32 s63, s63, s64")
        P.i("s_xor_b32 s64, s63, 1")
        P.i("s_cmp_ge_u32 s%d, 14" % sJ)
        P.i("s_cselect_b32 s65, 0x%x, 0" % WS_BYTES)
        for u, nt in ((0, 61), (1, 62)):
            P.i("s_lshl_b32 s66, s%d, 15" % nt)
            P.i("s_lshl_b32 s67, s%d, 13" % sW)
            P.i("s_add_u32 s66, s66, s67")
            P.i("s_add_u32 s66, s66, s65")
            P.i("s_add_u32 s%d, s66, 0x%x" % (sW2 + u, W2_OFF))
            P.i("s_mul_i32 s66, s%d, %d" % (nt, 112 * 1024))
            P.i("s_mul_i32 s67, s%d, 28672" % sW)
            P.i("s_add_u32 s66, s66, s67")
            P.i("s_add_u32 s66, s66, s65")
            P.i("s_add_u32 s%d, s66, 0x%x" % (sW4 + u, W4_OFF))
        P.i("s_add_u32 s65, s65, s%d" % sGB)
        for z, tt in ((0, 63), (1, 64)):
            P.i("s_lshl_b32 s66, s%d, 15" % tt)
            P.i("s_lshl_b32 s67, s%d, 13" % sW)
            P.i("s_add_u32 s66, s66, s67")
            P.i("s_add_u32 s%d, s66, s65" % (sOz + z))
            P.i("s_mul_i32 s66, s%d, %d" % (tt, 112 * 1024))
            P.i("s_mul_i32 s67, s%d, 28672" % sW)
            P.i("s_add_u32 s66, s66, s67")
            P.i("s_add_u32 s%d, s66, s65" % (sHz + z))
        P.i("s_mul_i32 s66, s63, 28672")
        P.i("s_lshl_b32 s67, s61, 11")
        P.i("s_add_u32 s66, s66, s67")
        P.i("s_add_u32 s%d, s66, s65" % sXo)
        P.i("s_add_u32 s%d, s67, s%d" % (sXH, sGN))
        P.i("s_lshl_b32 s66, s63, 12")
        P.i("s_lshl_b32 s67, s61, 8")
        P.i("s_add_u32 s66, s66, s67")
        P.i("s_add_u32 s%d, s66, s65" % sSo)
        P.i("s_add_u32 s%d, s67, s%d" % (sXHS, sGN))
        P.i("s_add_u32 s%d, s%d, 0x%x" % (sXH, sXH, G_XH))
        P.i("s_add_u32 s%d, s%d, 0x%x" % (sXHS, sXHS, G_XHST))
        P.i("s_cmp_eq_u32 s63, 3")
        P.i("s_cselect_b32 s%d, s%d, 0x%x" % (sXH, sXH, WS_BYTES))
        P.i("s_cselect_b32 s%d, s%d, 0x%x" % (sXHS, sXHS, WS_BYTES))
        P.i("s_and_b32 s66, s59, 7")
        P.i("s_lshl_b32 s66, s66, 8")
        P.i("s_lshl_b32 s67, s63, 6")
        P.i("s_add_u32 s66, s66, s67")
        P.i("s_lshr_b32 s67, s59, 3")
        P.i("s_add_u32 s66, s66, s67")
        P.i("s_mul_i32 s66, s66, 896")
        P.i("s_lshl_b32 s67, s61, 6")
        P.i("s_add_u32 s%d, s66, s67" % sOutO)
        for r in range(4): P.i("v_mov_b32 v%d, 0" % (XM + r))
        P.i("s_lshl_b32 s61, s%d, 10" % sW)
        P.i("s_add_u32 s61, s61, %d" % MISC)
        P.i("v_add_u32 v30, s61, v%d" % vL16)
        for q in range(3):
            P.i("ds_write_b128 v30, %s offset:%d" % (v(XM, 4), q * 4096))

    def w4_loads(self, lo, hi):
        specs = [(4 * f, 4, vL16, sW4 + f // 28, (f % 28) * 1024) for f in range(lo, hi)]
        return self.loads(specs, False, "w4", agpr=True)

    W2REG = [64 + 4 * i for i in range(13)] + [T + 16, T + 20, T + 24]
    OREG = [32 + 4 * i for i in range(8)] + [116 + 4 * i for i in range(7)] + [T]

    def S1(self, L):
        P = self.P
        pol = L > 0
        XB, STB = (G_X0, G_ST0) if L == 0 else (G_X2_0, G_ST2_0)
        Q, K, V, KH, VH = ACC
        HXR = T
        XMH = T + 28
        BIAS, CP = 32, 48
        sx = [84, 85, 86, 87]
        sst, shx, shs, sid = 88, 89, 90, 91
        for q in range(4):
            P.i("s_add_u32 s%d, s%d, s%d" % (sx[q], sXt, sQ[q]))
            P.i("s_add_u32 s%d, s%d, 0x%x" % (sx[q], sx[q], XB))
        xs = [(X + 4 * n, 4, vL16, sx[n // 7], (n % 7) * 1024) for n in range(28)]
        if L == 0:
            P.i("s_mul_i32 s92, s%d, 3" % sLW)
            P.i("s_add_u32 s93, s92, s%d" % sW1)
            xl = self.loads(xs, False, "x")
            for m in range(7):
                for f in range(3 * m, 3 * m + 3):
                    if f % 4 == 0:
                        P.i("s_add_u32 m0, s92, %d" % (f * 1024))
                        P.i("s_add_u32 s94, s93, %d" % (f * 1024))
                    P.i(dma(vL16, 94, (f % 4) * 1024), ("w1", m))
                self.put(xl[m])
            P.i("s_min_u32 s92, s%d, 2" % sW)
            P.i("s_lshl_b32 s92, s92, 10")
            P.i("s_add_u32 m0, s92, %d" % (84 * 1024))
            P.i("s_add_u32 s94, s92, s%d" % sW1)
            P.i("s_add_u32 s94, s94, %d" % (84 * 1024))
            P.i(dma(vL16, 94, 0), ("w1", 7))
            P.i("v_lshrrev_b32 v30, 5, v31")
            P.i("v_and_b32 v%d, 31, v31" % vST)
            P.i("v_lshlrev_b32 v%d, 3, v%d" % (vST, vST))
            P.i("v_lshl_add_u32 v%d, v30, 8, v%d" % (vST, vST))
            P.i("v_and_b32 v%d, 7, v31" % vHS)
            P.i("v_add_u32 v%d, 24, v%d" % (vHS, vHS))
            P.i("v_lshlrev_b32 v%d, 4, v%d" % (vHX, vHS))
            P.i("v_lshl_add_u32 v%d, v30, 9, v%d" % (vHX, vHX))
            P.i("v_lshlrev_b32 v%d, 3, v%d" % (vHS, vHS))
            P.i("v_lshl_add_u32 v%d, v30, 8, v%d" % (vHS, vHS))
            P.i("s_lshl_b32 s%d, s%d, 12" % (sSt, sW))
            P.i("s_add_u32 s%d, s%d, s%d" % (sSt, sSt, sGB))
            P.i("s_sub_u32 s61, s59, 1")
            P.i("s_and_b32 s61, s61, 7")
            P.i("s_and_b32 s62, s59, 8")
            P.i("s_or_b32 s61, s61, s62")
            P.i("s_lshl_b32 s%d, s61, 21" % sGP)
            P.i("s_add_u32 s%d, s%d, 0x%x" % (sGP, sGP, GRP_OFF))
            P.i("s_add_u32 s%d, s%d, 0x%x" % (shx, sGP, G_X0 + 3 * 28672))
            P.i("s_add_u32 s%d, s%d, 0x%x" % (shs, sGP, G_ST0 + 3 * 4096))
        else:
            P.i("s_add_u32 s%d, s%d, 0x%x" % (shx, sGB, G_XH))
            P.i("s_add_u32 s%d, s%d, 0x%x" % (shs, sGB, G_XHST))
        P.i("s_add_u32 s%d, s%d, s%d" % (shx, shx, sLW))
        P.i("s_add_u32 s%d, s%d, 0x%x" % (sst, sSt, STB))
        sts = [(KH + 2 * i, 2, vST, sst, i * 512) for i in range(7)]
        hxs = [(HXR + 4 * m, 4, vHX, shx, m * 1024) for m in range(7)]
        hss = [(VH + 2 * i, 2, vHS, shs, i * 512) for i in range(7)]
        W = Weave()
        if L == 0:
            self.put(self.loads(sts, False, "st"))
            self.put(self.loads(hxs + hss, False, "hx"))
            self.put(xl[7:])
            self.prologue2()
            P.i("s_add_u32 s92, s%d, 0x%x" % (sXo, G_X0))
            self.put(self.loads([(RES, 4, vL16, 92, 0), (RES + 4, 4, vL16, 92, 1024)], False, "res"))
            P.i("s_add_u32 s%d, s%d, 0x%x" % (sid, sGB, G_IDS))
        else:
            P.waitvm("w1")
            P.i("s_waitcnt lgkmcnt(0)")
            P.i("s_barrier")
            first = sts + xs[:4]
            self.put(self.loads(first, True, "x"))
            ops, fin = self.check(first)
            self.put(ops); self.put(fin)
            self.stamp("S1.%d poll" % L)
            self.put(self.loads(xs[4:], True, "x"))
        reads = []
        ring = [0]
        def wfrag(q, off):
            r = RING + 4 * (ring[0] % 8); ring[0] += 1
            reads.append((W.n(), q, off, r))
            return a(r, 4)
        def mm(acc, wf, xf, swap, first):
            A, B = (xf, wf) if swap else (wf, xf)
            W.mfma("%s %s, %s, %s, %s" % (MF, v(acc, 16), A, B, "0" if first else v(acc, 16)))
        gap_of_n = {}
        for n in range(28):
            q, m = n // 7, n % 7
            xf = v(X + 4 * n, 4)
            gap_of_n[n] = W.n()
            mm(K, wfrag(q, m * 3072 + 1024), xf, False, n == 0)
            mm(V, wfrag(q, m * 3072 + 2048), xf, True, n == 0)
            if n < 21: mm(Q, wfrag(q, m * 3072), xf, False, n == 0)
        mm(K, wfrag(4, 1024), v(XM, 4), False, False); gK = W.n() - 1
        mm(V, wfrag(4, 2048), v(XM, 4), True, False); gV = W.n() - 1
        gH0 = W.n()
        for m in range(7):
            xf = v(HXR + 4 * m, 4)
            mm(KH, wfrag(0, m * 3072 + 1024), xf, False, m == 0)
            mm(VH, wfrag(0, m * 3072 + 2048), xf, True, m == 0)
        mm(KH, wfrag(4, 1024), v(XMH, 4), False, False); gKH = W.n() - 1
        mm(VH, wfrag(4, 2048), v(XMH, 4), True, False); gVH = W.n() - 1
        for n in range(21, 28):
            mm(Q, wfrag(3, (n % 7) * 3072), v(X + 4 * n, 4), False, False)
        mm(Q, wfrag(4, 0), v(XM, 4), False, False)
        N = W.n()
        D = 4
        gB2 = gVH + 5
        areg = {0: vWA0, 1: vWA1, 2: vWA0, 3: vWA1, 4: vT0}
        P.i("s_mul_i32 s92, s%d, 3" % sQ[0])
        P.i("v_add_u32 v%d, s92, v%d" % (vWA0, vL16))
        P.i("v_add_u32 v%d, s92, v%d" % (vT1, vL16))
        P.i("s_mul_i32 s92, s%d, 3" % sQ[1])
        P.i("v_add_u32 v%d, s92, v%d" % (vWA1, vL16))
        P.i("v_add_u32 v%d, %d, v%d" % (vT0, 84 * 1024, vL16))
        seenq = set()
        for (g, q, off, r) in reads:
            ar = areg[q]
            if q == 0 and g >= gH0: ar = vT1
            at = min(g - D, gB2 - 2)
            if L == 0 and q == 0 and g < gH0 and off % 3072 == 1024:
                W.addpin(at, WaitVM(("w1", off // 3072)))
            if q in (1, 2, 3) and q not in seenq:
                seenq.add(q)
                if q == 1 and L == 0:
                    W.addpin(at, WaitVM("w1"), "s_waitcnt lgkmcnt(0)", "s_barrier")
                if q >= 2:
                    W.addpin(at - 3, "s_mul_i32 s92, s%d, 3" % sQ[q], "v_add_u32 v%d, s92, v%d" % (ar, vL16))
            W.addpin(at, "ds_read_b128 %s, v%d offset:%d" % (a(r, 4), ar, off))
        if pol:
            for lo, hi in ((4, 7), (7, 14), (14, 21), (21, 28)):
                ops, fin = self.check(xs[lo:hi])
                g = gap_of_n[lo]
                W.stream(ops, earliest=g - 1 - (len(ops) + 3) // 4, deadline=g - 1)
                W.addpre(g, *fin)
            hl = self.loads(hxs + hss, True, "hx")
            W.stream(hl, earliest=gH0 - 34, deadline=gH0 - 24)
            ops, fin = self.check(hxs + hss)
            W.stream(ops, earliest=gH0 - 14, deadline=gH0 - 9)
            W.addpre(gH0 - 8, *fin)
        own = self.stats_ops(KH, XM, vRSTD)
        own.append("v_mul_f32 v%d, 0x%x, v%d" % (vC, f2u(28 ** -0.5 * LOG2E), vRSTD))
        own.append("s_lshl_b32 s93, s%d, 7" % sW)
        own.append("s_add_u32 s93, s93, %d" % (L_RS + 128))
        own.append("v_lshrrev_b32 v%d, 1, v%d" % (KH + 6, vT8))
        own.append("v_add_u32 v%d, s93, v%d" % (KH + 6, KH + 6))
        own.append("ds_write_b32 v%d, v%d" % (KH + 6, vRSTD))
        W.stream(own, earliest=20 if L == 0 else 2, deadline=gH0 - 12)
        hst = ["s_lshr_b32 s22, s%d, 1" % sW, "s_sub_u32 s94, s22, 1", "s_sub_u32 s95, 0, s22",
               "s_and_b32 s22, s%d, 1" % sW, "s_sub_u32 s96, s22, 1", "s_sub_u32 s22, 0, s22",
               "s_and_b32 s16, s94, s96", "s_and_b32 s17, s95, s96", "s_and_b32 s18, s94, s22", "s_and_b32 s19, s95, s22"]
        W.stream(hst, earliest=40, deadline=gH0 - 9)
        hst = self.stats_ops(VH, XMH, VH + 14, qmask=(16, 18))
        hst.append("v_lshrrev_b32 v%d, 1, v%d" % (VH + 6, vHS))
        hst.append("v_and_b32 v%d, 127, v%d" % (VH + 6, VH + 6))
        hst.append("v_add_u32 v%d, %d, v%d" % (VH + 6, L_RS, VH + 6))
        hst.append("ds_write_b32 v%d, v%d" % (VH + 6, VH + 14))
        W.stream(hst, earliest=gH0 - 8, deadline=gH0)
        bi = []
        def lanemask(f):
            m = 0
            for l in range(64):
                if f(l & 31, l >> 5): m |= 1 << l
            return m
        for r in range(16):
            g_, i_ = r >> 2, r & 3
            m = lanemask(lambda q_, hi: 0 <= q_ - (8 * g_ + 4 * hi + i_) <= 7)
            bi.append(["s_mov_b32 s20, 0x%x" % (m & 0xffffffff), "s_mov_b32 s21, 0x%x" % (m >> 32),
                       "v_cndmask_b32_e64 v%d, v%d, 0, s[20:21]" % (BIAS + r, vNEG)])
        for r in range(12): bi.append("v_mov_b32 v%d, 0" % (CP + r))
        for i_ in range(4):
            m = lanemask(lambda q_, hi: 0 <= q_ - (-8 + 4 * hi + i_) <= 7)
            bi.append(["s_and_b32 s20, s%d, 0x%x" % (sFirst, m & 0xffffffff), "s_and_b32 s21, s%d, 0x%x" % (sFirst, m >> 32),
                       "v_cndmask_b32_e64 v%d, v%d, 0, s[20:21]" % (CP + 12 + i_, vNEG)])
        W.stream(bi, earliest=gap_of_n[8], deadline=gK)
        w2s = [(self.W2REG[f], 4, vL16, sW2 + f // 8, (f % 8) * 1024) for f in range(16)]
        w2l = self.loads(w2s, False, "w2")
        pf = self.tile_dma(sW3, 0, 3, ("w3", 0)) + self.tile_dma(sW3, SLOT, 4, ("w3", 1))
        if L == 0:
            W.stream([[Inst(ld(vVAR, 1, vHS, sid, 0, True), "idl")]], earliest=30)
            W.stream(pf, earliest=22, every=2)
        else:
            W.stream(pf, earliest=6, every=2, deadline=gH0 - 36)
        W.stream(w2l[:13], earliest=gap_of_n[21] + (2 if L == 0 else 8), every=1)
        W.stream(w2l[13:], earliest=gVH + 1)
        MK = K + 8
        mreg = [K + 8 + i for i in range(8)] + [V + 8, V + 9]
        RK = V + 10
        AD = V + 14
        ex = []
        for i in range(8): ex.append((gK + 3, "v_cvt_pk_bf16_f32 v%d, v%d, v%d" % (K + i, K + 2 * i, K + 2 * i + 1)))
        for i in range(8): ex.append((gV + 3, "v_cvt_pk_bf16_f32 v%d, v%d, v%d" % (V + i, V + 2 * i, V + 2 * i + 1)))
        ex.append("v_and_b32 v%d, 0x70, v%d" % (AD, vL16))
        ex.append("v_lshrrev_b32 v%d, 2, v%d" % (AD + 1, vL16))
        ex.append("v_and_b32 v%d, 0x80, v%d" % (AD + 1, AD + 1))
        ex.append("s_lshl_b32 s93, s%d, 8" % sW)
        ex.append("s_add_u32 s93, s93, %d" % (L_KX + 1024))
        ex.append(["s_cmp_eq_u32 s%d, 3" % sW, "s_cselect_b32 s93, %d, s93" % L_DUM])
        ex.append("v_add3_u32 v%d, v%d, v%d, s93" % (AD, AD, AD + 1))
        ex.append(["s_mov_b32 exec_lo, 0xff000000", "s_mov_b32 exec_hi, 0xff000000",
                   "ds_write_b128 v%d, %s" % (AD, v(K, 4)), "ds_write_b128 v%d, %s offset:2048" % (AD, v(K + 4, 4)),
                   "s_mov_b64 exec, -1"])
        ex.append("s_lshl_b32 s93, s%d, 10" % sW)
        ex.append("s_add_u32 s93, s93, %d" % (L_VX + 2048 + 8))
        ex.append(["s_cmp_eq_u32 s%d, 3" % sW, "s_cselect_b32 s93, %d, s93" % L_DUM])
        ex.append("v_add_u32 v%d, s93, v%d" % (AD + 1, vL16))
        ex.append("ds_write_b64 v%d, %s" % (AD + 1, v(V + 6, 2)))
        ex.append("s_lshl_b32 s93, s%d, 7" % sW)
        ex.append("s_add_u32 s93, s93, %d" % (L_KX - 384))
        ex.append("v_add_u32 v%d, s93, v%d" % (AD, vHX))
        ex.append("s_lshr_b32 s93, s%d, 1" % sW)
        ex.append("s_lshl_b32 s93, s93, 10")
        ex.append("s_and_b32 s94, s%d, 1" % sW)
        ex.append("s_lshl_b32 s94, s94, 3")
        ex.append("s_add_u32 s93, s93, s94")
        ex.append("s_add_u32 s93, s93, %d" % L_VX)
        ex.append("v_add_u32 v%d, s93, v%d" % (AD + 1, vL16))
        for i in range(8): ex.append((gKH + 2, "v_cvt_pk_bf16_f32 v%d, v%d, v%d" % (KH + i, KH + 2 * i, KH + 2 * i + 1)))
        for i in (6, 7): ex.append((gVH + 2, "v_cvt_pk_bf16_f32 v%d, v%d, v%d" % (VH + i, VH + 2 * i, VH + 2 * i + 1)))
        ex.append(["s_mov_b32 exec_lo, 0xff000000", "s_mov_b32 exec_hi, 0xff000000",
                   "ds_write_b128 v%d, %s" % (AD, v(KH, 4)), "ds_write_b128 v%d, %s offset:2048" % (AD, v(KH + 4, 4)),
                   "s_mov_b64 exec, -1"])
        ex.append("ds_write_b64 v%d, %s" % (AD + 1, v(VH + 6, 2)))
        W.stream(ex, earliest=gK + 3, deadline=gB2 - 1, prio=True)
        W.addpre(gB2, "s_waitcnt lgkmcnt(0)", "s_barrier")
        mk = []
        for g_ in range(4):
            for h in range(2):
                mk.append("v_perm_b32 v%d, v%d, v%d, s%d" % (mreg[2 * g_ + h], BIAS + 4 * g_ + 2 * h + 1, BIAS + 4 * g_ + 2 * h, sPerm))
        for h in range(2):
            mk.append("v_perm_b32 v%d, v%d, v%d, s%d" % (mreg[8 + h], CP + 12 + 2 * h + 1, CP + 12 + 2 * h, sPerm))
        mk.append("v_lshrrev_b32 v%d, 7, v%d" % (vWA0, vL16))
        mk.append("v_and_b32 v%d, 4, v%d" % (vWA0, vWA0))
        mk.append("v_lshrrev_b32 v%d, 3, v%d" % (vCHK, vT8))
        mk.append("v_sub_u32 v%d, v%d, v%d" % (vWA0, vCHK, vWA0))
        mk.append("s_lshl_b32 s95, s%d, 7" % sW)
        mk.append("s_add_u32 s95, s95, %d" % (L_RS + 128))
        for i in range(4):
            mk.append("v_subrev_u32 v%d, %d, v%d" % (RK + i, i, vWA0))
            mk.append("v_and_b32 v%d, 7, v%d" % (RK + i, RK + i))
            mk.append("v_sub_u32 v%d, v%d, v%d" % (RK + i, vCHK, RK + i))
            mk.append("v_lshl_add_u32 v%d, v%d, 2, s95" % (RK + i, RK + i))
        KP, VP = T, T + 8
        rd = []
        pre = ["v_and_b32 v%d, 0x70, v%d" % (vWA0, vL16), "v_lshrrev_b32 v%d, 2, v%d" % (vCHK, vL16), "v_and_b32 v%d, 0x80, v%d" % (vCHK, vCHK),
               "s_lshl_b32 s95, s%d, 8" % sW, "s_add_u32 s95, s95, %d" % (L_KX + 768),
               "v_add3_u32 v%d, v%d, v%d, s95" % (vWA0, vWA0, vCHK),
               "v_mov_b32 v%d, %d" % (vCHK, L_KX + 112 * 16),
               "s_mov_b32 s20, 0xff000000", "s_mov_b32 s21, 0xff000000",
               "v_cndmask_b32_e64 v%d, v%d, v%d, s[20:21]" % (vWA0, vCHK, vWA0),
               "v_add_u32 v%d, %d, v%d" % (vT1, L_KX, vL16),
               ["s_cmp_eq_u32 s%d, 0" % sW, "s_cselect_b64 s[20:21], -1, 0"],
               "v_cndmask_b32_e64 v%d, v%d, v%d, s[20:21]" % (vWA0, vWA0, vT1),
               "v_add_u32 v%d, %d, v%d" % (vT1, L_VX, vL16),
               "v_cndmask_b32_e64 v%d, v%d, v%d, s[20:21]" % (vCHK, vCHK, vT1),
               "s_lshl_b32 s95, s%d, 10" % sW,
               "v_add_u32 v%d, s95, v%d" % (vT1, vT1)]
        W.stream(mk + [(gVH - 3, x) for x in pre], earliest=gV + 6, deadline=gB2 - 1)
        rd.append("ds_read_b128 %s, v%d" % (v(KP, 4), vWA0))
        rd.append("ds_read_b128 %s, v%d offset:2048" % (v(KP + 4, 4), vWA0))
        for i in range(4): rd.append("ds_read_b32 v%d, v%d" % (RK + i, RK + i))
        rd.append("ds_read_b128 %s, v%d" % (v(VP, 4), vCHK))
        rd.append("ds_read_b128 %s, v%d offset:1024" % (v(VP + 4, 4), vT1))
        W.stream(rd, earliest=gB2, deadline=gB2 + 1)
        W.emit(P); print('weave n=%d over=%d' % (W.n(), W.over))
        self.stamp("S1.%d gemm" % L)
        t2 = self.tile_dma(sW3, 2 * SLOT, 0, ("w3", 2))
        SP, SO = KH, VH
        FQ = Q + 8
        for i in range(4): P.i("v_mul_f32 v%d, v%d, v%d" % (116 + i, RK + i, vC))
        self.put(t2[0:2])
        for i in range(8): P.i("v_cvt_pk_bf16_f32 v%d, v%d, v%d" % (Q + i, Q + 2 * i, Q + 2 * i + 1))
        FQ = 116
        P.i("%s %s, %s, %s, %s" % (MF, v(SP, 16), v(KP, 4), v(Q, 4), v(CP, 16)))
        self.put(t2[2])
        P.i("%s %s, %s, %s, %s" % (MF, v(SP, 16), v(KP + 4, 4), v(Q + 4, 4), v(SP, 16)))
        self.put(t2[3])
        P.i("%s %s, %s, %s, %s" % (MF, v(SO, 16), v(K, 4), v(Q, 4), v(BIAS, 16)))
        self.put(t2[4])
        P.i("%s %s, %s, %s, %s" % (MF, v(SO, 16), v(K + 4, 4), v(Q + 4, 4), v(SO, 16)))
        self.put(t2[5:7])
        for i in range(4): P.i("v_add_f32 v%d, v%d, v%d" % (SP + i, SP + i, SP + 4 + i))
        for i in range(4): P.i("v_add_f32 v%d, v%d, v%d" % (SP + 8 + i, SP + 8 + i, SP + 12 + i))
        for i in range(4): P.i("v_add_f32 v%d, v%d, v%d" % (SP + i, SP + i, SP + 8 + i))
        for i in range(4): P.i("v_max3_f32 v%d, v%d, v%d, v%d" % (SP + i, SP + i, SO + i, SO + 4 + i))
        for i in range(4): P.i("v_max3_f32 v%d, v%d, v%d, v%d" % (SP + i, SP + i, SO + 8 + i, SO + 12 + i))
        for i in range(4): P.i("v_mul_f32 v%d, v%d, v%d" % (SP + i, SP + i, FQ + i))
        M = SP + 4
        P.i("v_max_f32 v%d, v%d, v%d" % (M, SP, SP + 1))
        P.i("v_max3_f32 v%d, v%d, v%d, v%d" % (M, M, SP + 2, SP + 3))
        P.i("v_mov_b32 v%d, v%d" % (M + 1, M))
        P.i("v_permlane32_swap_b32 v%d, v%d" % (M, M + 1))
        P.i("v_max_f32 v%d, v%d, v%d" % (M, M, M + 1))
        for i in range(4): P.i("v_sub_f32 v%d, v%d, v%d" % (SP + i, SP + i, M))
        for i in range(4): P.i("v_exp_f32 v%d, v%d" % (SP + i, SP + i))
        P.i("v_add_f32 v%d, v%d, v%d" % (M, SP, SP + 1))
        P.i("v_add_f32 v%d, v%d, v%d" % (M + 1, SP + 2, SP + 3))
        P.i("v_add_f32 v%d, v%d, v%d" % (M, M, M + 1))
        P.i("v_mov_b32 v%d, v%d" % (M + 1, M))
        P.i("v_mul_f32 v%d, v%d, v%d" % (SP, SP, RK))
        P.i("v_mul_f32 v%d, v%d, v%d" % (SP + 1, SP + 1, RK + 1))
        P.i("v_permlane32_swap_b32 v%d, v%d" % (M, M + 1))
        P.i("v_add_f32 v%d, v%d, v%d" % (M, M, M + 1))
        P.i("v_rcp_f32 v%d, v%d" % (M, M))
        P.i("v_mul_f32 v%d, v%d, v%d" % (SP + 2, SP + 2, RK + 2))
        P.i("v_mul_f32 v%d, v%d, v%d" % (SP + 3, SP + 3, RK + 3))
        for i in range(4): P.i("v_mul_f32 v%d, v%d, v%d" % (SP + i, SP + i, M))
        P.i("v_cvt_pk_bf16_f32 v%d, v%d, v%d" % (M, SP, SP + 1))
        P.i("v_cvt_pk_bf16_f32 v%d, v%d, v%d" % (M + 1, SP + 2, SP + 3))
        PF = 120
        OA = BIAS
        for i in range(4): P.i("v_bfi_b32 v%d, v%d, 0, v%d" % (PF + i, mreg[i], M + (i & 1)))
        for i in range(4, 6): P.i("v_bfi_b32 v%d, v%d, 0, v%d" % (PF + i, mreg[i], M + (i & 1)))
        P.i("%s %s, %s, %s, 0" % (MF, v(OA, 16), v(V, 4), v(PF, 4)))
        for i in range(6, 8): P.i("v_bfi_b32 v%d, v%d, 0, v%d" % (PF + i, mreg[i], M + (i & 1)))
        for i in range(4): P.i("v_bfi_b32 v%d, v%d, 0, v%d" % (PF + 8 + i, mreg[8 + (i & 1)], M + (i & 1)))
        P.i("%s %s, %s, %s, %s" % (MF, v(OA, 16), v(V + 4, 4), v(PF + 4, 4), v(OA, 16)))
        self.put(t2[7])
        P.i("%s %s, %s, %s, %s" % (MF, v(OA, 16), v(VP, 4), v(PF + 8, 4), v(OA, 16)))
        P.i("%s %s, %s, %s, %s" % (MF, v(OA, 16), v(VP + 4, 4), v(PF + 8, 4), v(OA, 16)))
        if L == 0:
            spec = [(vVAR, 1, vHS, sid, 0)]
            ops, fin = self.check(spec)
            self.put(ops); self.put(fin)
            P.i("v_cmp_ne_u32 vcc, s%d, v%d" % (sXcc, vVAR))
            P.i("s_cmp_lg_u64 vcc, 0")
            P.i("s_cselect_b32 s%d, 1, 0" % sMode)
            if self.o.get("force_slow"): P.i("s_mov_b32 s%d, 1" % sMode)
        P.i("s_add_u32 s92, s%d, 0x%x" % (sOp, G_O0 if L == 0 else G_O1))
        for i in range(8): P.i("v_cvt_pk_bf16_f32 v%d, v%d, v%d" % (OA + i, OA + 2 * i, OA + 2 * i + 1))
        self.put(self.publish([(OA, 4, vL16, 92, 0), (OA + 4, 4, vL16, 92, 1024)], "pub"))
        self.stamp("S1.%d pub" % L)

    RACC = [ACC[0], ACC[1], ACC[3], ACC[4]]
    def res_unpack(self):
        o = []
        for i in range(8):
            o.append("v_lshlrev_b32 v%d, 16, v%d" % (ACC[0] + 2 * i, RES + i))
            o.append("v_and_b32 v%d, 0xffff0000, v%d" % (ACC[0] + 2 * i + 1, RES + i))
        return o
    def red_addr(self, RB, regs):
        o = []
        for a_ in (1, 2, 3):
            o.append(["s_xor_b32 s22, s%d, %d" % (sW, a_), "s_mul_i32 s22, s22, 12288",
                      "s_add_u32 s22, s22, %d" % (RB + (a_ - 1) * 4096), "v_add_u32 v%d, s22, v%d" % (regs[a_ - 1], vL16)])
        o.append(["s_mul_i32 s22, s%d, 12288" % sW, "s_add_u32 s22, s22, %d" % RB, "v_add_u32 v%d, s22, v%d" % (regs[3], vL16)])
        return o
    def red_writes(self, W, last_gap, regs):
        for a_ in (1, 2, 3):
            ws = ["ds_write_b128 v%d, %s offset:%d" % (regs[a_ - 1], v(self.RACC[a_] + 4 * q, 4), q * 1024) for q in range(4)]
            W.stream(ws, earliest=last_gap[a_] + 2)
    def red_epilogue(self, regs, kind, XB=None, STB=None, waits=()):
        P = self.P
        A0 = ACC[0]
        for t in waits: P.waitvm(t)
        P.i("s_waitcnt lgkmcnt(0)")
        P.i("s_barrier")
        for q in range(4):
            for a_ in (1, 2, 3):
                P.i("ds_read_b128 %s, v%d offset:%d" % (v(self.RACC[a_] + 4 * q, 4), regs[3], (a_ - 1) * 4096 + q * 1024))
        if kind != "out":
            P.i("s_add_u32 s92, s%d, 0x%x" % (sXo, XB))
            P.i("s_add_u32 s93, s%d, 0x%x" % (sSo, STB))
        S = ACC[2]
        if kind == "xh":
            P.i("v_cmp_lt_u32 vcc, 191, v%d" % vT8)
            P.i("v_mov_b32 v%d, 0x%x" % (S + 4, WS_BYTES))
            P.i("v_cndmask_b32 v%d, v%d, v%d, vcc" % (S + 5, S + 4, vL16))
            P.i("v_cndmask_b32 v%d, v%d, v%d, vcc" % (S + 4, S + 4, vT8))
        if kind == "out":
            P.i("v_mul_u32_u24 v%d, 224, v%d" % (S + 4, vT8))
            P.i("v_lshrrev_b32 v%d, 5, v%d" % (S + 5, vL16))
            P.i("v_and_b32 v%d, 16, v%d" % (S + 5, S + 5))
            P.i("v_add_u32 v%d, v%d, v%d" % (S + 4, S + 4, S + 5))
        for q in range(4):
            for a_ in (1, 2, 3):
                for h in range(2):
                    r = 4 * q + 2 * h
                    P.i("v_pk_add_f32 %s, %s, %s" % (v(A0 + r, 2), v(A0 + r, 2), v(self.RACC[a_] + r, 2)))
            for h in range(2):
                P.i("v_cvt_pk_bf16_f32 v%d, v%d, v%d" % (RES + 2 * q + h, A0 + 4 * q + 2 * h, A0 + 4 * q + 2 * h + 1))
            if kind != "out":
                for h in range(2):
                    r = RES + 2 * q + h
                    first = q == 0 and h == 0
                    P.i("v_dot2_f32_bf16 v%d, v%d, s%d, %s" % (S, r, sONES, "0" if first else "v%d" % S))
                    P.i("v_dot2_f32_bf16 v%d, v%d, v%d, %s" % (S + 1, r, r, "0" if first else "v%d" % (S + 1)))
        if kind == "out":
            for g in (0, 4):
                P.i("v_permlane32_swap_b32 v%d, v%d" % (RES + g, RES + g + 2))
                P.i("v_permlane32_swap_b32 v%d, v%d" % (RES + g + 1, RES + g + 3))
                P.i(st(RES + g, 4, S + 4, sOutO, g * 8, srd=OUT))
            return
        if kind == "xh":
            P.i(st(RES, 4, S + 5, sXH, 0, True), "pub")
            P.i(st(RES + 4, 4, S + 5, sXH, 1024, True), "pub")
        self.put(self.publish([(RES, 4, vL16, 92, 0), (RES + 4, 4, vL16, 92, 1024)], "pub"))
        P.i("v_mov_b32 v%d, v%d" % (S + 2, S))
        P.i("v_mov_b32 v%d, v%d" % (S + 3, S + 1))
        P.i("v_permlane32_swap_b32 v%d, v%d" % (S, S + 2))
        P.i("v_permlane32_swap_b32 v%d, v%d" % (S + 1, S + 3))
        P.i("v_add_f32 v%d, v%d, v%d" % (S, S, S + 2))
        P.i("v_add_f32 v%d, v%d, v%d" % (S + 1, S + 1, S + 3))
        if kind == "xh":
            P.i(st(S, 2, S + 4, sXHS, 0, True), "pub")
        self.put(self.publish([(S, 2, vT8, 93, 0)], "pub"))

    def skip_idle(self, Ljoin, extra=None):
        P = self.P
        Ls = P.newlabel("Lidle")
        P.i("s_cmp_ge_u32 s%d, 14" % sJ)
        P.i("s_cbranch_scc1 %s" % Ls)
        R = Prog(); R.label(Ls)
        R.i("s_waitcnt vmcnt(0) lgkmcnt(0)")
        R.i("s_nop 7"); R.i("s_nop 7")
        if extra:
            save = self.P; tl = save.tail
            self.P = R; R.tail = tl
            extra()
            self.P = save; R.tail = []
        R.i("s_waitcnt vmcnt(0) lgkmcnt(0)")
        R.i("s_branch %s" % Ljoin)
        P.tail.append(R)

    def S2(self, L):
        P = self.P
        OB = G_O0 if L == 0 else G_O1
        HB = G_H0 if L == 0 else G_H1
        self.LS3 = P.newlabel("LS3")
        self.skip_idle(self.LS3)
        P.i("s_and_b32 s92, s%d, 1" % sJ)
        P.i("s_mul_i32 s92, s92, 224")
        P.i("s_lshr_b32 s93, s%d, 1" % sJ)
        P.i("s_lshl_b32 s93, s93, 5")
        P.i("s_add_u32 s92, s92, s93")
        P.i("s_lshl_b32 s93, s%d, 3" % sW)
        P.i("s_add_u32 s92, s92, s93")
        P.i("s_lshl_b32 s92, s92, 10")
        P.i("s_add_u32 s92, s92, s%d" % sGB)
        P.i("s_add_u32 s92, s92, 0x%x" % HB)
        P.i("s_add_u32 s93, s92, 4096")
        po = [(POI, 4, vL16, 92 + i // 4, (i % 4) * 1024) for i in range(8)]
        if L == 0:
            P.i("s_add_u32 s94, s%d, 0x%x" % (sXo, G_X2_0))
            P.i("s_add_u32 s95, s%d, 0x%x" % (sXo, G_X1_1))
            po += [(POI, 4, vL16, 94 + i // 2, (i % 2) * 1024) for i in range(4)]
        self.put(self.publish(po, "poi"))
        for z in range(2): P.i("s_add_u32 s%d, s%d, 0x%x" % (84 + z, sOz + z, OB))
        korder = [1, 3, 5, 7, 0, 2, 4, 6]
        os_ = [(self.OREG[2 * i + z], 4, vL16, 84 + z, k * 1024) for i, k in enumerate(korder) for z in range(2)]
        regs = [vWA0, vWA1, vT0, vT1]
        self.put(self.red_addr(1 * SLOT, regs))
        self.put(self.res_unpack())
        first = sorted(os_[:8], key=lambda x: (x[3], x[4]))
        self.put(self.loads(first, True, "o"))
        ops, fin = self.check(first)
        self.put(ops); self.put(fin)
        self.stamp("S2.%d poll" % L)
        second = sorted(os_[8:], key=lambda x: (x[3], x[4]))
        self.put(self.loads(second, True, "o"))
        W = Weave()
        def mm(i, a_):
            u, z = a_ & 1, a_ >> 1
            acc = self.RACC[a_]
            W.mfma("%s %s, %s, %s, %s" % (MF, v(acc, 16), v(self.W2REG[u * 8 + korder[i]], 4), v(self.OREG[2 * i + z], 4),
                                        "0" if (i == 0 and a_) else v(acc, 16)))
        for i in range(4):
            for a_ in (1, 2, 3, 0): mm(i, a_)
        last = {}
        for a_ in (1, 2, 3, 0):
            for i in range(4, 8): mm(i, a_)
            last[a_] = W.n() - 1
        ops, fin = self.check(second)
        W.stream(ops, earliest=11, deadline=15)
        W.addpre(16, *fin)
        self.red_writes(W, last, regs)
        if L == 0:
            W.stream(self.w4_loads(0, self.o.get("w4_s2", 8)), earliest=1)
        W.emit(P); print('weave n=%d over=%d' % (W.n(), W.over))
        self.stamp("S2.%d gemm" % L)
        self.red_epilogue(regs, "x", G_X1_0 if L == 0 else G_X1_1, G_ST1_0 if L == 0 else G_ST1_1, waits=("poi",))
        self.stamp("S2.%d pub" % L)

    def silu_ops(self, A, i, E, F):
        o = []
        for r in range(8): o.append("v_mul_f32 v%d, v%d, v%d" % (E + r, A + r, vC))
        for r in range(8):
            o.append("v_exp_f32 v%d, v%d" % (E + r, E + r))
            o.append("v_mul_f32 v%d, v%d, v%d" % (A + r, A + r, A + 8 + r))
        for r in range(8): o.append("v_fma_f32 v%d, v%d, v%d, v%d" % (E + r, E + r, vVAR, vVAR))
        for r in range(8): o.append("v_rcp_f32 v%d, v%d" % (E + r, E + r))
        for r in range(8): o.append("v_mul_f32 v%d, v%d, v%d" % (A + r, A + r, E + r))
        for r in range(4): o.append("v_cvt_pk_bf16_f32 v%d, v%d, v%d" % (F + r, A + 2 * r, A + 2 * r + 1))
        o.append(self.publish([(F, 4, vL16, 94 + i // 4, (i % 4) * 1024)], "pub"))
        return o

    def S34(self, L):
        P = self.P
        XB, STB, HB = (G_X1_0, G_ST1_0, G_H0) if L == 0 else (G_X1_1, G_ST1_1, G_H1)
        P.label(self.LS3)
        P.waitvm("w3")
        P.i("s_waitcnt lgkmcnt(0)")
        P.i("s_barrier")
        self.put(self.tile_dma(sW3, 3 * SLOT, 1, ("w3", 3)))
        if L == 0:
            P.i("s_add_u32 s92, s%d, 0x%x" % (sOp, G_O1))
            self.put(self.publish([(POI, 4, vL16, 92, 0), (POI, 4, vL16, 92, 1024)], "poi"))
        P.i("s_add_u32 s92, s%d, 0x%x" % (sXt, XB))
        P.i("s_add_u32 s93, s%d, 0x%x" % (sSt, STB))
        P.i("s_add_u32 s94, s%d, 0x%x" % (sHp, HB))
        P.i("s_add_u32 s95, s94, 4096")
        P.i("v_add_u32 v%d, %d, v%d" % (vWA1, 2 * SLOT, vL16))
        P.i("v_add_u32 v%d, %d, v%d" % (vT0, 4 * SLOT, vL16))
        SR = ACC[4]
        xs = [(X + 4 * n, 4, vL16, 92, n * 1024) for n in range(28)]
        sts = [(SR + 2 * i, 2, vST, 93, i * 512) for i in range(7)]
        slot = [3, 4, 0, 1, 2, 3, 4]
        tacc = [ACC[0], ACC[1], ACC[2], ACC[3], ACC[0], ACC[1], ACC[2]]
        W = Weave()
        reads = []
        ring = [0]
        def mm(t, n):
            r = RING + 4 * (ring[0] % 8); ring[0] += 1
            reads.append((W.n(), t, n, r))
            xf = v(X + 4 * n, 4) if n < 28 else v(XM, 4)
            W.mfma("%s %s, %s, %s, %s" % (MF, v(tacc[t], 16), a(r, 4), xf, "0" if n == 0 else v(tacc[t], 16)))
        gn = {}
        glast = {}; gfirst = {}
        for n in range(29):
            gn[n] = W.n()
            for t in range(3):
                mm(t, n); glast[t] = W.n() - 1
        g6 = {}
        for t in range(3, 7):
            gfirst[t] = W.n()
            for n in range(29):
                g6[n] = W.n()
                mm(t, n)
            glast[t] = W.n() - 1
        N3 = W.n()
        D = 4
        pre_reads = []
        for (g, t, n, r) in reads:
            sl = slot[t]
            ar = [vL16, vL16, vWA1, vWA1, vT0][sl]
            off = (sl & 1 if sl < 4 else 0) * SLOT + n * 1024
            at = g - D
            if t >= 3 and n == 0:
                W.addpin(at, WaitVM(("w3", t)), "s_barrier")
            rd = "ds_read_b128 %s, v%d offset:%d" % (a(r, 4), ar, off)
            if at < 0: pre_reads.append(rd)
            else: W.addpin(at, rd)
        self.put(pre_reads)
        first = sts + xs[:4]
        self.put(self.loads(first, True, "x"))
        ops, fin = self.check(first)
        self.put(ops); self.put(fin)
        self.stamp("S3.%d poll" % L)
        self.put(self.loads(xs[4:], True, "x"))
        for lo, hi in ((4, 8), (8, 14), (14, 21), (21, 28)):
            ops, fin = self.check(xs[lo:hi])
            g = gn[lo]
            W.stream(ops, earliest=g - 1 - (len(ops) + 3) // 4, deadline=g - 1)
            W.addpre(g, *fin)
        own = self.stats_ops(SR, XM, vRSTD, vVAR)
        own.append("v_mul_f32 v%d, 0x%x, v%d" % (vC, f2u(-LOG2E), vRSTD))
        W.stream(own, earliest=1, deadline=gn[27])
        parts = []
        for t in range(6):
            oo = self.silu_ops(tacc[t], t, T, T + 8 + 4 * (t & 1))
            if t == 0 and L == 0: oo.insert(len(oo) - 1, WaitVM("poi"))
            dl = gfirst[t + 4] - 2 if t + 4 < 7 else (gfirst[6] if t == 4 else N3 - 3)
            parts.append(W.mk(oo, earliest=glast[t] + 3, deadline=dl))
        W.chain(parts)
        gfree = gfirst[3] + 1
        W.addpre(gfree, "s_barrier")
        parts = [W.mk(self.tile_dma(sW3, 4 * SLOT, 2, ("w3", 4)), earliest=8, every=3, deadline=gfirst[3] - 10),
                 W.mk(self.tile_dma(sW3, 5 * SLOT, 3, ("w3", 5)), earliest=gfree, every=2, deadline=gfirst[4]),
                 W.mk(self.tile_dma(sW3, 6 * SLOT, 4, ("w3", 6)), earliest=gfree + 16, every=2, deadline=gfirst[5])]
        if L == 0:
            P.i("s_add_u32 s96, s%d, s%d" % (sW1, sLW))
            parts += [W.mk(self.tile_dma(96, 0, 0, ("w1", 0)), earliest=gfirst[4] + 6, every=2),
                      W.mk(self.tile_dma(96, SLOT, 1, ("w1", 1)), earliest=gfirst[5] - D + 1, every=2),
                      W.mk(self.tile_dma(96, 2 * SLOT, 2, ("w1", 2)), earliest=gfirst[6] - D + 1, every=2)]
        W.chain(parts, prio=True)
        if L == 0:
            W.stream(self.w4_loads(self.o.get("w4_s2", 8), 56), earliest=34, every=1, deadline=gfirst[6])
        pool = [X + 4 * n for n in range(28)] + [T + 16 + 4 * i for i in range(4)]
        hb = []
        for jj in range(4):
            for z in range(2):
                hb.append("s_add_u32 s%d, s%d, 0x%x" % (84 + jj * 2 + z, sHz + z, HB + jj * 7168))
        W.stream(hb, earliest=gfirst[5], deadline=gfirst[6] - 1)
        hfast = []; hstab = []
        for idx in range(56):
            i, jj, z = idx // 8, (idx >> 1) & 3, idx & 1
            reg = (pool[28:] + pool[:28])[idx % 32]
            hfast.append(Inst(ld(reg, 4, vL16, 84 + jj * 2 + z, (i % 4) * 1024, True), "h"))
            hstab.append((reg, 4, vL16, sHz + z, HB + (jj * 7 + i) * 1024))
        W.stream([(g6[0] + 0 if idx < 4 else g6[idx - 4], hfast[idx]) for idx in range(32)], earliest=gfirst[6])
        W.stream(self.res_unpack(), earliest=gfirst[6] + 2, deadline=N3 - 3)
        W.emit(P); print('weave n=%d over=%d' % (W.n(), W.over))
        self.stamp("S3.%d gemm" % L)
        self.LS1 = P.newlabel("LS1")
        def idle_ep():
            self.put(self.silu_ops(tacc[6], 6, T, T + 8))
        self.skip_idle(self.LS1 if L == 0 else self.Lfin, idle_ep)
        W = Weave()
        regs = [vWA0, vWA1, vT0, vT1]
        guse = {}
        def m4(idx, u):
            i, jj, z = idx // 8, (idx >> 1) & 3, idx & 1
            a_ = u + 2 * z
            acc = self.RACC[a_]
            W.mfma("%s %s, %s, %s, %s" % (MF, v(acc, 16), a(4 * (u * 28 + jj * 7 + i), 4), v(hstab[idx][0], 4),
                                        "0" if (idx < 2 and a_) else v(acc, 16)))
            guse[idx] = W.n() - 1
        for idx in range(48):
            m4(idx, 0); m4(idx, 1)
        last = {}
        for a_ in (1, 2, 3, 0):
            for jj in range(4): m4(48 + jj * 2 + (a_ >> 1), a_ & 1)
            last[a_] = W.n() - 1
        ep6 = self.silu_ops(tacc[6], 6, T, T + 8)
        W.stream(ep6, earliest=0)
        for i in range(7):
            ops, fin = self.check(sorted(hstab[8 * i:8 * i + 8], key=lambda x: (x[3], x[4])))
            g = 16 * i
            if i == 0:
                self.put(ops)
            else:
                W.stream(ops, earliest=g - 6, deadline=g - 1)
            W.addpre(g, *fin)
        upd = ["s_add_u32 s%d, s%d, 4096" % (84 + k, 84 + k) for k in range(8)]
        W.stream([[upd[idx - 32], hfast[idx]] if idx < 40 else hfast[idx] for idx in range(32, 56)], earliest=1, every=2)
        W.addpre(20, "s_barrier")
        W.stream(self.red_addr(3 * SLOT, regs), earliest=24)
        self.red_writes(W, last, regs)
        W.emit(P); print('weave n=%d over=%d' % (W.n(), W.over))
        self.stamp("S4.%d gemm" % L)
        if L == 0:
            self.red_epilogue(regs, "xh", G_X2_0, G_ST2_0)
            self.stamp("S4.%d pub" % L)
            P.label(self.LS1)
        else:
            self.red_epilogue(regs, "out")
            self.stamp("S4.%d pub" % L)

    def finish(self):
        P = self.P
        P.label(self.Lfin)
        if self.stamps:
            P.i("s_lshl_b32 s61, s2, 2")
            P.i("s_add_u32 s61, s61, s%d" % sW)
            P.i("s_lshl_b32 s61, s61, 8")
            P.i("s_add_u32 s61, s61, 0x%x" % STAMP_OFF)
            P.i(st(vSTAMP, 1, vL4, 61, 0))
        P.label(self.Lend)
        P.i("s_endpgm")

def gen_main(main_label, stop=99, stamps=False, opts=None):
    G = Gen(main_label, stop, stamps, opts)
    G.prologue()
    G.stamp("start")
    n = 0
    for L in range(2):
        for f in (G.S1, G.S2, G.S34):
            if n < stop: f(L)
            elif n == stop and f == G.S34: G.P.label(G.LS3)
            n += 1
    G.finish()
    return G
```

```python
from fw import *
from layout import *

def srd(P, d, base, nbytes):
    P.i("s_mov_b32 %s, %s" % (s(d), s(base)))
    P.i("s_and_b32 %s, %s, 0xffff" % (s(d + 1), s(base + 1)))
    P.i("s_mov_b32 %s, 0x%x" % (s(d + 2), nbytes))
    P.i("s_mov_b32 %s, 0x00020000" % s(d + 3))

def gen_prep(main_label, code_bytes):
    P = Prog()
    WS = 24; SRC = 28; DN = 32; CODE = 36
    sW = 40
    P.i("s_load_dwordx16 s[4:19], s[0:1], 0")
    P.i("s_load_dwordx2 s[20:21], s[0:1], 72")
    Lend = P.newlabel("Lpend")
    P.i("s_cmp_ge_u32 s2, 256")
    P.i("s_cbranch_scc1 %s" % Lend)
    P.i("v_lshrrev_b32 v1, 6, v0")
    P.i("v_and_b32 v2, 63, v0")
    P.i("v_readfirstlane_b32 %s, v1" % s(sW))
    P.i("v_lshlrev_b32 v3, 4, v2")
    P.i("v_lshrrev_b32 v4, 3, v2")
    P.i("v_and_b32 v5, 7, v2")
    P.i("v_lshlrev_b32 v5, 4, v5")
    P.i("v_lshrrev_b32 v6, 5, v2")
    P.i("v_bfe_u32 v7, v2, 4, 1")
    P.i("v_bfe_u32 v8, v2, 2, 2")
    P.i("v_and_b32 v9, 3, v2")
    P.i("v_lshl_add_u32 v10, v6, 2, v8")
    P.i("v_mov_b32 v12, -1")
    P.i("v_mov_b32 v13, -1")
    P.i("v_mov_b32 v14, -1")
    P.i("v_mov_b32 v15, -1")
    ones = 16
    for r in range(4):
        P.i("v_mov_b32 v%d, 0x3f803f80" % (ones + r))
    ACC = 32
    for r in range(16):
        P.i("v_mov_b32 v%d, 0" % (ACC + r))
    P.i("s_getpc_b64 s[36:37]")
    Lpc = P.newlabel("Lpc")
    P.label(Lpc)
    P.i("s_add_u32 s36, s36, %s-%s" % (main_label, Lpc))
    P.i("s_addc_u32 s37, s37, 0")
    P.i("s_and_b32 s37, s37, 0xffff")
    P.i("s_mov_b32 s38, %s" % code_bytes)
    P.i("s_mov_b32 s39, 0x00020000")
    P.i("s_mul_i32 s41, %s, 7168" % s(sW))
    P.i("s_waitcnt lgkmcnt(0)")
    srd(P, WS, 20, WS_BYTES)
    srd(P, DN, 16, 1792 * 896)
    srd(P, SRC, 4, 2048 * 896)
    LU1, LU2, LU3, LU5, LU0 = [P.newlabel("LU") for _ in range(5)]
    P.i("s_cmp_lt_u32 s2, 112")
    P.i("s_cbranch_scc1 %s" % LU1)
    P.i("s_cmp_lt_u32 s2, 160")
    P.i("s_cbranch_scc1 %s" % LU2)
    P.i("s_cmp_lt_u32 s2, 174")
    P.i("s_cbranch_scc1 %s" % LU3)
    P.i("s_cmp_lt_u32 s2, 192")
    P.i("s_cbranch_scc1 %s" % LU0)
    P.i("s_branch %s" % LU5)

    def common_issue(P):
        P.i("s_sub_u32 s50, s2, 60")
        P.i("s_max_i32 s50, s50, 0")
        P.i("s_mul_i32 s51, s50, 9363")
        P.i("s_lshr_b32 s51, s51, 16")
        P.i("s_mul_i32 s52, s51, 7")
        P.i("s_sub_u32 s52, s50, s52")
        P.i("s_lshl_b32 s53, s51, 2")
        P.i("s_add_u32 s53, s53, %s" % s(sW))
        P.i("s_mul_i32 s54, s53, %d" % (16 * 896))
        P.i("s_lshl_b32 s55, s52, 7")
        P.i("s_add_u32 s54, s54, s55")
        P.i("v_mul_u32_u24 v20, 896, v4")
        P.i("v_add_u32 v20, v20, v5")
        P.i("s_lshl_b32 s55, %s, 11" % s(sW))
        P.i("s_add_u32 s55, s55, 28672")
        P.i("s_mov_b32 m0, s55")
        P.i("buffer_load_dwordx4 v20, %s, s54 offen lds" % s(DN, 4), "r2")
        P.i("s_add_u32 m0, s55, 1024")
        P.i("s_add_u32 s54, s54, %d" % (8 * 896))
        P.i("buffer_load_dwordx4 v20, %s, s54 offen lds" % s(DN, 4), "r2")
        P.i("s_and_b32 s56, s2, 7")
        P.i("s_lshl_b32 s56, s56, 1")
        P.i("s_lshr_b32 s57, s2, 7")
        P.i("s_add_u32 s56, s56, s57")
        P.i("s_lshl_b32 s56, s56, 21")
        P.i("s_bfe_u32 s57, s2, 0x40003")
        P.i("s_mul_i32 s57, s57, 20480")
        P.i("s_add_u32 s56, s56, s57")
        P.i("s_mul_i32 s57, %s, 5120" % s(sW))
        P.i("s_add_u32 s56, s56, s57")
        P.i("s_add_u32 s56, s56, 0x%x" % GRP_OFF)
        for q in range(4):
            P.i("buffer_store_dwordx4 v[12:15], v3, %s, s56 offen offset:%d" % (s(WS, 4), q * 1024), "poison")
        P.i("s_add_u32 s56, s56, 4096")
        P.i("buffer_store_dwordx4 v[12:15], v3, %s, s56 offen" % s(WS, 4), "poison")
        P.i("s_lshr_b32 s57, s2, 3")
        P.i("s_lshl_b32 s58, %s, 5" % s(sW))
        P.i("s_add_u32 s57, s57, s58")
        P.i("s_lshl_b32 s57, s57, 10")
        P.i("buffer_load_dwordx4 v[24:27], v3, %s, s57 offen" % s(CODE, 4), "code")

    def dma7(P, voff, sbase, sstep, mbase, mstep):
        for q in range(7):
            if q == 0:
                P.i("s_mov_b32 m0, %s" % mbase)
            else:
                P.i("s_add_u32 m0, %s, %d" % (mbase, q * mstep))
                P.i("s_add_u32 %s, %s, %d" % (sbase, sbase, sstep))
            P.i("buffer_load_dwordx4 %s, %s, %s offen lds" % (voff, s(SRC, 4), sbase), "r1")

    FR = 48
    def colsum_store(P, sdst_frag28, sp):
        P.i("v_cvt_pk_bf16_f32 v22, v%d, v%d" % (ACC, ACC))
        P.i("v_and_b32 v23, 0xffff0000, v22")
        P.i("v_sub_f32 v23, v%d, v23" % ACC)
        P.i("v_cvt_pk_bf16_f32 v23, v23, v23")
        P.i("v_and_b32 v22, 0xffff, v22")
        P.i("v_lshl_or_b32 v22, v23, 16, v22")
        P.i("v_mov_b32 v23, v22")
        P.i("s_lshr_b32 s60, %s, 1" % sp)
        P.i("s_lshl_b32 s60, s60, 9")
        P.i("s_and_b32 s61, %s, 1" % sp)
        P.i("s_lshl_b32 s61, s61, 3")
        P.i("s_add_u32 s60, s60, s61")
        P.i("s_add_u32 s60, s60, %s" % sdst_frag28)
        P.i("v_and_b32 v21, 31, v2")
        P.i("v_lshlrev_b32 v21, 4, v21")
        P.i("buffer_store_dwordx2 v[22:23], v21, %s, s60 offen" % s(WS, 4))

    R2 = 80
    def round2_reads(P):
        P.i("v_lshlrev_b32 v29, 7, v10")
        P.i("v_lshl_add_u32 v29, v7, 5, v29")
        P.i("v_lshl_add_u32 v29, v9, 3, v29")
        P.i("v_add_u32 v29, s55, v29")
        P.i("s_mul_i32 s62, s52, 224")
        P.i("s_add_u32 s62, s62, s53")
        P.i("s_lshl_b32 s62, s62, 10")
        P.i("s_add_u32 s62, s62, 0x%x" % W4_OFF)
        P.i("s_cmp_lt_u32 s2, 60")
        P.i("s_cselect_b32 s62, 0x%x, s62" % WS_BYTES)
        P.i("s_add_u32 s63, s62, %d" % (112 * 1024))
        P.waitvm("r2")
        for nt in range(2):
            P.i("ds_read_b64_tr_b16 %s, v29 offset:%d" % (v(R2 + 4 * nt, 2), nt * 64))
            P.i("ds_read_b64_tr_b16 %s, v29 offset:%d" % (v(R2 + 4 * nt + 2, 2), nt * 64 + 1024))
    def round2_stores(P):
        P.i("buffer_store_dwordx4 %s, v3, %s, s62 offen" % (v(R2, 4), s(WS, 4)))
        P.i("buffer_store_dwordx4 %s, v3, %s, s63 offen" % (v(R2 + 4, 4), s(WS, 4)))
    P.label(LU1)
    P.reset()
    P.i("s_lshr_b32 s42, s2, 2")
    P.i("s_and_b32 s43, s2, 3")
    P.i("s_cmp_lt_u32 %s, 2" % s(sW))
    P.i("s_cselect_b32 %s, s12, s14" % s(SRC))
    P.i("s_cselect_b32 %s, s13, s15" % s(SRC + 1))
    P.i("s_and_b32 %s, %s, 0xffff" % (s(SRC + 1), s(SRC + 1)))
    P.i("s_mov_b32 %s, %d" % (s(SRC + 2), 448 * 3584))
    P.i("s_and_b32 s44, %s, 1" % s(sW))
    P.i("s_mul_i32 s44, s44, 56")
    P.i("s_mul_i32 s45, s43, 112")
    P.i("s_add_u32 s44, s44, s45")
    P.i("s_mul_i32 s44, s44, 3584")
    P.i("s_lshl_b32 s45, s42, 7")
    P.i("s_add_u32 s44, s44, s45")
    P.i("v_mul_u32_u24 v11, 3584, v4")
    P.i("v_add_u32 v11, v11, v5")
    dma7(P, "v11", "s44", 8 * 3584, "s41", 1024)
    common_issue(P)
    P.i("v_mul_u32_u24 v11, 14336, v7")
    P.i("v_lshl_add_u32 v11, v10, 7, v11")
    P.i("v_lshl_add_u32 v11, v9, 3, v11")
    P.i("s_lshl_b32 s45, %s, 5" % s(sW))
    P.i("v_add_u32 v11, s45, v11")
    P.i("s_lshl_b32 s46, s42, 2")
    P.i("s_add_u32 s46, s46, %s" % s(sW))
    P.i("s_mul_i32 s46, s46, %d" % (29 * 1024))
    P.i("s_add_u32 s46, s46, 0x%x" % W3_OFF)
    P.i("s_add_u32 s47, s46, %d" % (28 * 1024))
    P.i("s_mul_i32 s45, s43, %d" % (7 * 1024))
    P.i("s_add_u32 s46, s46, s45")
    round2_reads(P)
    P.waitvm("r1")
    P.i("s_barrier")
    round2_stores(P)
    def frags_tr(P, n, offs, d2, masks=None, colsum=True, stride=1024):
        for f in range(n):
            P.i("ds_read_b64_tr_b16 %s, v11 offset:%d" % (v(FR + 4 * f, 2), offs[f]))
            P.i("ds_read_b64_tr_b16 %s, v11 offset:%d" % (v(FR + 4 * f + 2, 2), offs[f] + d2))
        for f in range(n):
            if masks:
                for r in masks(f):
                    P.i("v_and_b32 v%d, v28, v%d" % (FR + 4 * f + r, FR + 4 * f + r))
            per = 4096 // stride + (1 if stride == 3072 else 0)
            if f and f % per == 0:
                P.i("s_add_u32 s46, s46, %d" % (per * stride))
            P.i("buffer_store_dwordx4 %s, v3, %s, s46 offen offset:%d" % (v(FR + 4 * f, 4), s(WS, 4), (f % per) * stride))
            if colsum:
                P.i("v_mfma_f32_32x32x16_bf16 %s, %s, %s, %s" % (v(ACC, 16), v(ones, 4), v(FR + 4 * f, 4), v(ACC, 16)))
    frags_tr(P, 7, [f * 2048 for f in range(7)], 1024)
    colsum_store(P, "s47", "s43")
    P.i("s_endpgm")

    P.label(LU2)
    P.reset()
    P.i("s_sub_u32 s48, s2, 112")
    P.i("s_lshr_b32 s42, s48, 4")
    P.i("s_bfe_u32 s43, s48, 0x20002")
    P.i("s_and_b32 s49, s48, 3")
    srd(P, SRC, 6, 448 * 2688)
    P.i("s_mul_i32 s44, %s, 28" % s(sW))
    P.i("s_mul_i32 s45, s43, 112")
    P.i("s_add_u32 s44, s44, s45")
    P.i("s_mul_i32 s44, s44, 2688")
    P.i("s_mul_i32 s45, s42, 896")
    P.i("s_add_u32 s44, s44, s45")
    P.i("s_mul_i32 s45, s49, 224")
    P.i("s_add_u32 s44, s44, s45")
    P.i("v_lshrrev_b32 v11, 4, v2")
    P.i("v_mul_u32_u24 v11, 2688, v11")
    P.i("v_and_b32 v21, 15, v2")
    P.i("v_lshl_add_u32 v11, v21, 4, v11")
    dma7(P, "v11", "s44", 4 * 2688, "s41", 1024)
    common_issue(P)
    P.i("v_lshlrev_b32 v11, 8, v10")
    P.i("v_lshl_add_u32 v11, v7, 5, v11")
    P.i("v_lshl_add_u32 v11, v9, 3, v11")
    P.i("s_mul_i32 s45, %s, 56" % s(sW))
    P.i("v_add_u32 v11, s45, v11")
    P.i("v_and_b32 v21, 31, v2")
    P.i("v_cmp_gt_u32 vcc, 28, v21")
    P.i("v_cndmask_b32 v28, 0, v12, vcc")
    P.i("s_lshl_b32 s46, s49, 2")
    P.i("s_add_u32 s46, s46, %s" % s(sW))
    P.i("s_mul_i32 s46, s46, 87")
    P.i("s_add_u32 s46, s46, s42")
    P.i("s_lshl_b32 s46, s46, 10")
    if W1_OFF: P.i("s_add_u32 s46, s46, 0x%x" % W1_OFF)
    P.i("s_add_u32 s47, s46, %d" % (84 * 1024))
    P.i("s_mul_i32 s45, s43, %d" % (21 * 1024))
    P.i("s_add_u32 s46, s46, s45")
    round2_reads(P)
    P.waitvm("r1")
    P.i("s_barrier")
    round2_stores(P)
    frags_tr(P, 7, [f * 4096 for f in range(7)], 2048, masks=lambda f: range(4), stride=3072)
    colsum_store(P, "s47", "s43")
    P.i("s_endpgm")

    P.label(LU3)
    P.reset()
    P.i("s_sub_u32 s48, s2, 160")
    P.i("s_lshr_b32 s42, s48, 1")
    P.i("s_and_b32 s43, s48, 1")
    srd(P, SRC, 8, 448 * 896)
    P.i("s_mul_i32 s44, %s, 56" % s(sW))
    P.i("s_mul_i32 s45, s43, 224")
    P.i("s_add_u32 s44, s44, s45")
    P.i("s_mul_i32 s44, s44, 896")
    P.i("s_lshl_b32 s45, s42, 7")
    P.i("s_add_u32 s44, s44, s45")
    P.i("v_mul_u32_u24 v11, 896, v4")
    P.i("v_add_u32 v11, v11, v5")
    dma7(P, "v11", "s44", 8 * 896, "s41", 1024)
    common_issue(P)
    P.i("v_lshlrev_b32 v11, 7, v10")
    P.i("v_lshl_add_u32 v11, v7, 5, v11")
    P.i("v_lshl_add_u32 v11, v9, 3, v11")
    P.i("s_lshr_b32 s45, %s, 1" % s(sW))
    P.i("s_mul_i32 s49, s45, %d" % (112 * 128))
    P.i("s_and_b32 s47, %s, 1" % s(sW))
    P.i("s_lshl_b32 s46, s47, 6")
    P.i("s_add_u32 s49, s49, s46")
    P.i("v_add_u32 v11, s49, v11")
    P.i("v_cmp_gt_u32 vcc, 32, v2")
    P.i("v_cndmask_b32 v28, 0, v12, vcc")
    P.i("s_lshl_b32 s46, s42, 1")
    P.i("s_add_u32 s46, s46, s47")
    P.i("s_lshl_b32 s46, s46, 5")
    P.i("s_lshl_b32 s47, s43, 4")
    P.i("s_add_u32 s46, s46, s47")
    P.i("s_lshl_b32 s47, s45, 3")
    P.i("s_add_u32 s46, s46, s47")
    P.i("s_lshl_b32 s46, s46, 10")
    P.i("s_add_u32 s46, s46, 0x%x" % W2_OFF)
    round2_reads(P)
    P.waitvm("r1")
    P.i("s_barrier")
    round2_stores(P)
    frags_tr(P, 8, [(28 * (f >> 1) + 16 * (f & 1)) * 128 for f in range(8)], 1024,
             masks=lambda f: (2, 3) if f & 1 else (), colsum=False)
    P.i("s_endpgm")

    P.label(LU0)
    P.reset()
    common_issue(P)
    round2_reads(P)
    round2_stores(P)
    P.i("s_endpgm")

    P.label(LU5)
    P.reset()
    P.i("s_and_b32 s42, s2, 7")
    P.i("s_lshl_b32 s42, s42, 3")
    P.i("s_bfe_u32 s43, s2, 0x30003")
    P.i("s_add_u32 s42, s42, s43")
    P.i("s_lshl_b32 s44, s42, 5")
    P.i("s_lshl_b32 s45, %s, 3" % s(sW))
    P.i("s_add_u32 s44, s44, s45")
    P.i("s_lshr_b32 s45, s44, 10")
    P.i("s_and_b32 s44, s44, 1023")
    P.i("s_lshl_b32 s44, s44, 1")
    P.i("s_add_u32 s44, s44, s45")
    P.i("s_mul_i32 s44, s44, 896")
    P.i("v_lshlrev_b32 v21, 4, v4")
    P.i("v_xor_b32 v21, v21, v5")
    P.i("v_mul_u32_u24 v11, 1792, v4")
    P.i("v_add_u32 v11, v11, v21")
    P.i("s_lshl_b32 s45, %s, 10" % s(sW))
    dma7(P, "v11", "s44", 128, "s45", 4096)
    common_issue(P)
    P.i("v_and_b32 v21, 31, v2")
    P.i("v_lshlrev_b32 v11, 7, v21")
    P.i("v_add_u32 v11, v11, v5")
    P.i("v_lshl_add_u32 v11, v6, 3, v11")
    P.i("s_lshr_b32 s46, s42, 2")
    P.i("s_lshl_b32 s46, s46, 21")
    P.i("s_add_u32 s46, s46, 0x%x" % GRP_OFF)
    P.i("s_and_b32 s45, s42, 3")
    P.i("s_lshl_b32 s47, s45, 12")
    P.i("s_add_u32 s47, s47, s46")
    P.i("s_add_u32 s47, s47, 0x%x" % G_ST0)
    P.i("s_mul_i32 s45, s45, %d" % (28 * 1024))
    P.i("s_add_u32 s46, s46, s45")
    P.i("s_add_u32 s46, s46, s41")
    P.i("s_add_u32 s46, s46, 0x%x" % G_X0)
    P.i("s_mul_i32 s48, %s, 7" % s(sW))
    round2_reads(P)
    P.waitvm("r1")
    P.i("s_barrier")
    round2_stores(P)
    for f in range(7):
        P.i("s_add_u32 s49, s48, %d" % f)
        P.i("s_and_b32 s60, s49, 3")
        P.i("s_lshl_b32 s60, s60, 5")
        P.i("s_lshr_b32 s61, s49, 2")
        P.i("s_lshl_b32 s61, s61, 12")
        P.i("s_or_b32 s60, s60, s61")
        P.i("v_xor_b32 v21, s60, v11")
        P.i("v_xor_b32 v22, 16, v21")
        P.i("ds_read_b64 %s, v21" % v(FR + 4 * f, 2))
        P.i("ds_read_b64 %s, v22" % v(FR + 4 * f + 2, 2))
    for f in range(7):
        if f == 4:
            P.i("s_add_u32 s46, s46, 4096")
        P.i("buffer_store_dwordx4 %s, v3, %s, s46 offen offset:%d" % (v(FR + 4 * f, 4), s(WS, 4), (f % 4) * 1024))
        for r in range(4):
            P.i("v_dot2_f32_bf16 v%d, v%d, v%d, v%d" % (ACC, FR + 4 * f + r, ones, ACC))
            P.i("v_dot2_f32_bf16 v%d, v%d, v%d, v%d" % (ACC + 1, FR + 4 * f + r, FR + 4 * f + r, ACC + 1))
    P.i("v_mov_b32 v%d, v%d" % (ACC + 2, ACC))
    P.i("v_mov_b32 v%d, v%d" % (ACC + 3, ACC + 1))
    P.i("v_permlane32_swap_b32 v%d, v%d" % (ACC, ACC + 2))
    P.i("v_permlane32_swap_b32 v%d, v%d" % (ACC + 1, ACC + 3))
    P.i("v_add_f32 v%d, v%d, v%d" % (ACC, ACC, ACC + 2))
    P.i("v_add_f32 v%d, v%d, v%d" % (ACC + 1, ACC + 1, ACC + 3))
    P.i("v_cmp_gt_u32 vcc, 32, v2")
    P.i("v_cndmask_b32 v%d, 0, v%d, vcc" % (ACC, ACC))
    P.i("v_cndmask_b32 v%d, 0, v%d, vcc" % (ACC + 1, ACC + 1))
    P.i("v_and_b32 v21, 31, v2")
    P.i("v_lshlrev_b32 v21, 3, v21")
    P.i("v_lshl_add_u32 v21, v6, 10, v21")
    P.i("s_lshl_b32 s45, %s, 8" % s(sW))
    P.i("s_add_u32 s47, s47, s45")
    P.i("buffer_store_dwordx2 %s, v21, %s, s47 offen" % (v(ACC, 2), s(WS, 4)))
    P.i("buffer_store_dwordx2 %s, v21, %s, s47 offen offset:2048" % (v(ACC + 4, 2), s(WS, 4)))

    P.label(Lend)
    P.i("s_endpgm")
    return P
```

```python
KB = 1024
W1_OFF = 0x000000
W2_OFF = 0x160000
W4_OFF = 0x200000
W3_OFF = 0x400000
GRP_OFF = 0x800000
GRP_SZ = 0x200000
G_O0 = 0x00000
G_X1_0 = 0x20000
G_ST1_0 = 0x3C000
G_ST2_0 = 0x40000
G_ST1_1 = 0x44000
G_XH = 0x48000
G_XHST = 0x4F000
G_IDS = 0x4FE00
G_POISON_A_END = 0x50000
G_X0 = 0x50000
G_ST0 = 0x6C000
G_X2_0 = 0x70000
G_O1 = 0x90000
G_X1_1 = 0xB0000
G_H0 = 0x100000
G_H1 = 0x180000
WS_BYTES = 268435456
NAME = "interleave_layers__sliding_local_dilated__swiglu_ffn__prompt"

STAMP_OFF = 0x3000000
```

```python
import sys
from fw import *
from layout import *
from kprep import gen_prep
from kmain import gen_main

HEADER = open("cdna_kernels/%s.s.ref" % NAME).read().split("; Override launch geometry")[0]

def build(path, stop=99, stamps=False, opts=None):
    L = HEADER.rstrip("\n").split("\n")
    L.append("; @launch kernel=prep_kernel grid=(256,1,1) block=(256,1,1) lds=40960")
    L.append("; @launch kernel=%s_kernel grid=(256,1,1) block=(256,1,1) lds=163840" % NAME)
    L.append('.amdgcn_target "amdgcn-amd-amdhsa--gfx950"')
    main = NAME + "_kernel"
    G = gen_main(main, stop, stamps, opts)
    mt = kernel_text(main, G.P)
    L += kernel_text("prep_kernel", gen_prep(main, "Lmain_end-%s" % main))
    L += mt
    L.append("Lmain_end:")
    L += kernel_desc("prep_kernel", 96, 72, 96)
    L += kernel_desc(main, 512, 102, 256)
    if stamps: L.append("; STAMPS " + "|".join(G.names))
    open(path, "w").write("\n".join(L) + "\n")

if __name__ == "__main__":
    stop = int(sys.argv[1]) if len(sys.argv) > 1 else 99
    build("k.s", stop)
    build("ks.s", stop, stamps=True)
```

```python
import sys, re
src, dst = sys.argv[1], sys.argv[2]
L = open(src).read().split("\n")
main = [l for l in L if l.endswith("_kernel:") and "interleave" in l][0]
ip = L.index("prep_kernel:"); im = L.index(main)
out = []
def tail(startreg, base_off, slot, sa, extra=()):
    return ["s_waitcnt vmcnt(0) lgkmcnt(0)",
            "s_load_dwordx2 s[%d:%d], s[0:1], 64" % (sa, sa + 1),
            "s_memrealtime s[%d:%d]" % (sa + 4, sa + 5),
            "s_waitcnt lgkmcnt(0)",
            "s_sub_u32 s%d, s%d, %d" % (sa, sa, base_off), "s_subb_u32 s%d, s%d, 0" % (sa + 1, sa + 1),
            "s_and_b32 s%d, s%d, 0xffff" % (sa + 1, sa + 1), "s_mov_b32 s%d, 256" % (sa + 2), "s_mov_b32 s%d, 0x00020000" % (sa + 3),
            "s_mov_b64 exec, 1",
            "v_not_b32 v1, %s" % startreg, "v_mov_b32 v2, s%d" % (sa + 4), "v_mov_b32 v3, 0", "v_sub_u32 v4, v2, %s" % startreg,
            "v_mov_b32 v5, %s" % startreg, "v_not_b32 v6, v2",
            "s_nop 4",
            "buffer_atomic_umax v1, v3, s[%d:%d], 0 offen offset:%d" % (sa, sa + 3, slot * 4),
            "buffer_atomic_umax v2, v3, s[%d:%d], 0 offen offset:%d" % (sa, sa + 3, slot * 4 + 4),
            "buffer_atomic_umax v4, v3, s[%d:%d], 0 offen offset:%d" % (sa, sa + 3, slot * 4 + 8),
            "buffer_atomic_umax v5, v3, s[%d:%d], 0 offen offset:%d" % (sa, sa + 3, slot * 4 + 12),
            "buffer_atomic_umax v6, v3, s[%d:%d], 0 offen offset:%d" % (sa, sa + 3, slot * 4 + 16),
            "s_endpgm"]
for i, l in enumerate(L):
    t = l.strip()
    if i == ip:
        out += [l, "s_memrealtime s[64:65]", "s_waitcnt lgkmcnt(0)", "v_mov_b32 v95, s64"]; continue
    if i == im:
        out += [l, "s_memrealtime s[98:99]", "s_waitcnt lgkmcnt(0)", "v_mov_b32 v7, s98"]; continue
    if t == "s_endpgm":
        prev = L[i - 1].strip()
        if i < im:
            if prev.startswith("Lpend"):
                lab = out.pop(); out += ["s_branch Ldbgp", lab, "s_endpgm", "Ldbgp:"] + tail("v95", 0, 0, 64)
            else: out.append("s_branch Ldbgp")
        else:
            lab = out.pop(); assert lab.startswith("Lend"), lab
            out += tail("v7", 512, 8, 16) + [lab, "s_endpgm"]
        continue
    out.append(l)
open(dst, "w").write("\n".join(out))
```

```python
import sys, re
src, dst = sys.argv[1], sys.argv[2]
L = open(src).read().split("\n")
main = [l for l in L if l.endswith("_kernel:") and "interleave" in l][0]
ip = L.index("prep_kernel:"); im = L.index(main)
out = []
SO = 0x3000000
ptail = ["s_waitcnt vmcnt(0) lgkmcnt(0)", "s_memrealtime s[68:69]", "s_waitcnt lgkmcnt(0)",
         "v_mov_b32 v94, v95", "v_mov_b32 v95, s68", "s_lshl_b32 s66, s2, 2", "s_add_u32 s66, s66, s40", "s_lshl_b32 s66, s66, 7",
         "s_add_u32 s66, s66, 0x%x" % SO, "v_mov_b32 v3, 0", "s_mov_b64 exec, 1", "s_nop 4",
         "buffer_store_dwordx2 v[94:95], v3, s[24:27], s66 offen", "s_endpgm"]
def mtail(k):
  return ["s_waitcnt vmcnt(0) lgkmcnt(0)",
         "s_load_dwordx2 s[16:17], s[0:1], 64", "s_memrealtime s[20:21]", "s_memtime s[60:61]",
         "s_lshl_b32 s66, s2, 9", "s_add_u32 s66, s66, 0x%x" % SO, "v_mov_b32 v3, 0", "s_mov_b64 exec, 1", "s_nop 4",
         "buffer_load_dwordx2 v[8:9], v3, s[4:7], s66 offen sc1",
         "s_waitcnt vmcnt(0) lgkmcnt(0)",
         "s_and_b32 s17, s17, 0xffff", "s_mov_b32 s18, 64", "s_mov_b32 s19, 0x00020000",
         "v_sub_u32 v12, v7, v8", "v_sub_u32 v13, s20, v7", "v_sub_u32 v14, v9, v8", "v_mov_b32 v15, s60", "v_sub_u32 v15, v15, s99",
         "s_lshl_b32 s66, s2, 4", "s_lshl_b32 s67, s24, 8", "s_add_u32 s66, s66, s67", "s_nop 4",
         "buffer_store_dwordx4 v[12:15], v3, s[16:19], s66 offen", "s_endpgm"]
for i, l in enumerate(L):
    t = l.strip()
    if i == ip:
        out += [l, "s_memrealtime s[64:65]", "s_waitcnt lgkmcnt(0)", "v_mov_b32 v95, s64"]; continue
    if i == im:
        out += [l, "s_memrealtime s[98:99]", "s_waitcnt lgkmcnt(0)", "v_mov_b32 v7, s98", "s_nop 4", "s_memtime s[98:99]", "s_waitcnt lgkmcnt(0)", "s_mov_b32 s99, s98"]; continue
    if t == "s_endpgm":
        prev = L[i - 1].strip()
        if i < im:
            if prev.startswith("Lpend"):
                lab = out.pop(); out += ["s_branch Ldbgp", lab, "s_endpgm", "Ldbgp:"] + ptail
            else: out.append("s_branch Ldbgp")
        else:
            lab = out.pop(); assert lab.startswith("Lend"), lab
            out += mtail(0) + [lab, "s_endpgm"]
        continue
    out.append(l)
open(dst, "w").write("\n".join(out))
```

```python
import sys
from fw import *
from layout import *
import os, importlib
gen_main = importlib.import_module(os.environ.get('KM','kmain7')).gen_main

HEADER = open("cdna_kernels/%s.s.ref" % NAME).read().split("; Override launch geometry")[0]

def build(path, stop=99, stamps=False, opts=None):
    L = HEADER.rstrip("\n").split("\n")
    if opts.pop("plain", 0): L.append("; @launch grid=(256,1,1) block=(256,1,1) lds=163840")
    else: L.append("; @launch kernel=%s_kernel grid=(256,1,1) block=(256,1,1) lds=163840" % NAME)
    L.append('.amdgcn_target "amdgcn-amd-amdhsa--gfx950"')
    main = NAME + "_kernel"
    G = gen_main(main, stop, stamps, opts)
    L += kernel_text(main, G.P, mode=opts.get('al', 2))
    L.append("Lmain_end:")
    L += kernel_desc(main, 512, 102, 256)
    if stamps: L.append("; STAMPS " + "|".join(G.names))
    open(path, "w").write("\n".join(L) + "\n")

if __name__ == "__main__":
    opts = {}
    for a_ in sys.argv[1:]:
        k, v_ = a_.split("="); opts[k] = int(v_)
    stop = opts.pop("stop", 99)
    build("k.s", stop, opts=dict(opts))
    build("ks.s", 99, stamps=True, opts=dict(opts))
```

```python
import re

REG_RE = re.compile(r"\b([vas])(\d+)\b|\b([vas])\[(\d+):(\d+)\]|\b(vcc|exec|m0|scc)\b")

def regs_of(tok):
    out = []
    for m in REG_RE.finditer(tok):
        if m.group(1):
            out.append(m.group(1) + m.group(2))
        elif m.group(3):
            for i in range(int(m.group(4)), int(m.group(5)) + 1):
                out.append(m.group(3) + str(i))
        else:
            out.append(m.group(6))
    return out

TRANS = ("v_exp_f32", "v_log_f32", "v_rcp_f32", "v_rsq_f32", "v_sqrt_f32", "v_sin_f32", "v_cos_f32")

class Inst:
    __slots__ = ("text", "op", "kind", "rd", "wr", "tag", "mc", "note", "passes", "nstates", "cond", "m0s")
    def __init__(self, text, tag=None):
        self.text = text.strip()
        self.tag = tag
        self.note = None
        self.m0s = None
        self.cond = False
        self.mc = []
        self.passes = 0
        self.nstates = 1
        t = self.text
        if t.endswith(":"):
            self.op = "label"; self.kind = "label"; self.rd = []; self.wr = []; self.nstates = 0
            return
        if t.startswith(";") or t.startswith(".") or t == "":
            self.op = "comment"; self.kind = "comment"; self.rd = []; self.wr = []; self.nstates = 0
            return
        t = t.split(";")[0].strip()
        sp = t.split(None, 1)
        op = sp[0]
        self.op = op
        args = sp[1] if len(sp) > 1 else ""
        ops = [x.strip() for x in split_ops(args)]
        base = op[:-4] if op.endswith("_e32") or op.endswith("_e64") else op
        rd, wr = [], []
        if base.startswith("v_mfma"):
            self.kind = "mfma"
            wr = regs_of(ops[0]); rd = regs_of(ops[1]) + regs_of(ops[2]) + regs_of(ops[3])
            self.mc = regs_of(ops[3])
            self.passes = 8 if "32x32" in base else 4
        elif base.startswith("v_cmp"):
            self.kind = "valu"
            wr = regs_of(ops[0]); rd = sum((regs_of(o) for o in ops[1:]), [])
        elif base.startswith("v_permlane") and "swap" in base:
            self.kind = "valu"
            wr = regs_of(ops[0]) + regs_of(ops[1]); rd = list(wr)
        elif base in ("v_readfirstlane_b32", "v_readlane_b32"):
            self.kind = "valu"
            wr = regs_of(ops[0]); rd = sum((regs_of(o) for o in ops[1:]), [])
        elif base.startswith("v_"):
            self.kind = "trans" if base in TRANS else "valu"
            if base == "v_nop":
                pass
            else:
                wr = regs_of(ops[0]); rd = sum((regs_of(o) for o in ops[1:]), [])
                if base in ("v_add_co_u32", "v_sub_co_u32", "v_addc_co_u32"):
                    wr += regs_of(ops[1]); rd = sum((regs_of(o) for o in ops[2:]), [])
                if base.startswith("v_fmac") or base.startswith("v_dot2c") or base.startswith("v_pk_fmac"):
                    rd += wr
                if base == "v_cndmask_b32" and len(ops) == 3:
                    rd.append("vcc")
        elif base.startswith("buffer_load") or base.startswith("global_load"):
            if re.search(r"\blds\b", args):
                self.kind = "dma"
                rd = sum((regs_of(o) for o in ops), []) + ["m0"]
            else:
                self.kind = "vld"
                wr = regs_of(ops[0]); rd = sum((regs_of(o) for o in ops[1:]), [])
        elif base.startswith("buffer_store") or base.startswith("global_store") or base.startswith("buffer_atomic") or base.startswith("global_atomic"):
            self.kind = "vst"
            rd = sum((regs_of(o) for o in ops), [])
        elif base.startswith("buffer_wbl2") or base.startswith("buffer_inv"):
            self.kind = "vst"
        elif base.startswith("ds_read") or base.startswith("ds_bpermute") or base.startswith("ds_swizzle") or base.startswith("ds_permute"):
            self.kind = "dsr"
            wr = regs_of(ops[0]); rd = sum((regs_of(o) for o in ops[1:]), [])
        elif base.startswith("ds_write"):
            self.kind = "dsw"
            rd = sum((regs_of(o) for o in ops), [])
        elif base.startswith("s_load") or base.startswith("s_buffer_load") or base in ("s_memtime", "s_memrealtime"):
            self.kind = "smem"
            wr = regs_of(ops[0]); rd = sum((regs_of(o) for o in ops[1:]), [])
        elif base == "s_waitcnt":
            self.kind = "wait"
        elif base == "s_nop":
            self.kind = "nop"; self.nstates = int(ops[0], 0) + 1
        elif base in ("s_barrier", "s_endpgm", "s_sleep", "s_setprio"):
            self.kind = "misc"
        elif base.startswith("s_cbranch") or base == "s_branch" or base.startswith("s_setpc") or base.startswith("s_swappc"):
            self.kind = "branch"
            rd = sum((regs_of(o) for o in ops), [])
            if "vcc" in base: rd.append("vcc")
            if "scc" in base: rd.append("scc")
            if "exec" in base: rd.append("exec")
        elif base.startswith("s_cmp") or base.startswith("s_bitcmp"):
            self.kind = "salu"
            wr = ["scc"]; rd = sum((regs_of(o) for o in ops), [])
        elif base.startswith("s_"):
            self.kind = "salu"
            wr = regs_of(ops[0]); rd = sum((regs_of(o) for o in ops[1:]), [])
            if "saveexec" in base:
                wr.append("exec"); rd.append("exec")
            if base.startswith("s_cselect") or base.startswith("s_addc"):
                rd.append("scc")
        else:
            raise ValueError("unknown instruction: " + text)
        self.rd = rd; self.wr = wr

def split_ops(args):
    out, depth, cur = [], 0, ""
    for ch in args:
        if ch in "[(":
            depth += 1
        if ch in "])":
            depth -= 1
        if ch == "," and depth == 0:
            out.append(cur); cur = ""
        else:
            cur += ch
    if cur.strip():
        out.append(cur)
    return out

def I(text, tag=None):
    return Inst(text, tag)

class WaitVM:
    kind = "pseudo_vm"
    def __init__(self, tag): self.tag = tag
class WaitLG:
    kind = "pseudo_lg"
    def __init__(self, tag): self.tag = tag
class Reset:
    kind = "pseudo_reset"

def tagmatch(have, want):
    if have == want: return True
    if isinstance(have, tuple) and not isinstance(want, tuple): return have[0] == want
    if isinstance(have, tuple) and isinstance(want, tuple): return have[:len(want)] == want
    return False

VM_KINDS = ("vld", "vst", "dma")
LG_KINDS = ("dsr", "dsw")

def finalize(prog, check_only=False):
    out = []
    vm = []
    lg = []
    smem_out = []
    state = 0
    last_valu_w = {}
    last_trans_w = {}
    last_mfma_w = {}
    last_mfma_c = {}
    last_salu_m0 = -100
    m0w = [None]
    last_wide_st = {}
    last_dot_w = {}
    last_valu_exec = -100

    def emit(inst):
        nonlocal state
        out.append(inst)
        state += inst.nstates

    def later(i): return sum(1 for x in vm[i + 1:] if not x.cond)
    def trim(n):
        k = len(vm); c = 0
        while k > 0 and c < n:
            k -= 1
            if not vm[k].cond: c += 1
        return vm[k:]
    def laterl(i): return sum(1 for x in lg[i + 1:] if not x.cond)
    def triml(n):
        k = len(lg); c = 0
        while k > 0 and c < n:
            k -= 1
            if not lg[k].cond: c += 1
        return lg[k:]
    def wait(vmn=None, lgn=None):
        nonlocal vm, lg, smem_out
        parts = []
        if vmn is not None:
            parts.append("vmcnt(%d)" % vmn)
            vm = trim(vmn)
        if lgn is not None:
            parts.append("lgkmcnt(%d)" % lgn)
            lg = triml(lgn)
            if lgn == 0: smem_out = []
        emit(Inst("s_waitcnt " + " ".join(parts)))

    for p in prog:
        k = p.kind
        if k == "pseudo_reset":
            vm, lg, smem_out = [], [], []
            continue
        if k == "pseudo_vm":
            idx = [i for i, x in enumerate(vm) if tagmatch(x.tag, p.tag)]
            if idx:
                n = later(idx[-1])
                wait(vmn=min(n, 63))
            continue
        if k == "pseudo_lg":
            idx = [i for i, x in enumerate(lg) if tagmatch(x.tag, p.tag)]
            if idx:
                n = laterl(idx[-1])
                if smem_out: n = 0
                wait(lgn=min(n, 15))
            continue
        if k in ("label", "comment"):
            out.append(p); continue
        if k == "wait":
            m = re.search(r"vmcnt\((\d+)\)", p.text)
            if m:
                vm = trim(int(m.group(1)))
            m = re.search(r"lgkmcnt\((\d+)\)", p.text)
            if m:
                n = int(m.group(1)); lg = triml(n)
                if n == 0: smem_out = []
            emit(p); continue
        touched = set(p.rd) | set(p.wr)
        vmn = lgn = None
        for i in range(len(vm) - 1, -1, -1):
            x = vm[i]
            if x.kind == "vld" and touched.intersection(x.wr):
                if p.kind == "vld" and not set(p.rd).intersection(x.wr):
                    continue
                vmn = later(i)
                break
        for i in range(len(lg) - 1, -1, -1):
            x = lg[i]
            if x.kind == "dsr" and touched.intersection(x.wr):
                if p.kind == "dsr" and not set(p.rd).intersection(x.wr):
                    continue
                lgn = laterl(i)
                break
        for x in smem_out:
            if touched.intersection(x.wr):
                lgn = 0
        if lgn is not None and smem_out:
            lgn = 0
        if vmn is not None and vmn > 63: vmn = 63
        if lgn is not None and lgn > 15: lgn = 15
        if vmn is not None or lgn is not None:
            wait(vmn, lgn)
        need = 0
        def req(t0, n):
            nonlocal need
            gap = state - t0 - 1
            if gap < n: need = max(need, n - gap)
        isv = k in ("valu", "trans")
        if k == "mfma":
            for r in p.rd:
                if r in last_valu_w: req(last_valu_w[r], 2)
                if r in last_dot_w: req(last_dot_w[r][0], 3)
            ab = [r for r in p.rd if r not in p.mc]
            for r in ab:
                if r in last_mfma_w:
                    t0, q = last_mfma_w[r]; req(t0, 12 if q.passes == 8 else 8)
            for r in p.mc:
                if r in last_mfma_w:
                    t0, q = last_mfma_w[r]
                    if q.wr == p.mc and q.passes == p.passes: pass
                    else: req(t0, 10 if q.passes == 8 else 6)
            for r in p.wr:
                if r in last_mfma_w and r not in p.mc:
                    t0, q = last_mfma_w[r]; req(t0, 10 if q.passes == 8 else 6)
            req(last_valu_exec, 4)
        if isv or k in ("vld", "vst", "dma", "dsr", "dsw"):
            for r in touched:
                if r in last_mfma_w:
                    t0, q = last_mfma_w[r]; req(t0, 12 if q.passes == 8 else 8)
                if r in last_dot_w:
                    t0, q = last_dot_w[r]
                    same = isv and q.op == p.op
                    if same and (r in p.wr) and p.rd.count(r) <= 1: pass
                    else: req(t0, 3)
        if isv:
            for r in p.wr:
                if r in last_mfma_c:
                    t0, ps = last_mfma_c[r]; req(t0, 7 if ps == 8 else 3)
                if r in last_wide_st: req(last_wide_st[r], 2)
            for r in p.rd:
                if k == "valu" and r in last_trans_w: req(last_trans_w[r], 1)
                if (r[0] == "s" and r != "scc" or r == "vcc") and r in last_valu_w: req(last_valu_w[r], 2)
            if p.op.startswith("v_permlane") or "dpp" in p.text or "row_" in p.text:
                for r in p.rd:
                    if r in last_valu_w: req(last_valu_w[r], 2)
            if p.op.startswith("v_readfirstlane") or p.op.startswith("v_readlane"):
                for r in p.rd:
                    if r in last_valu_w: req(last_valu_w[r], 1 if r[0] == "v" else 4)
        if k in ("vld", "dsr"):
            for r in p.wr:
                if r in last_wide_st: req(last_wide_st[r], 1)
                if r in last_mfma_c:
                    t0, ps = last_mfma_c[r]; req(t0, 7 if ps == 8 else 3)
        if k in ("vld", "vst", "dma"):
            for r in p.rd:
                if r[0] == "s" and r in last_valu_w: req(last_valu_w[r], 5)
            for r in p.rd:
                if r in last_trans_w: req(last_trans_w[r], 1)
        if k in ("dsr", "dsw"):
            for r in p.rd:
                if r in last_trans_w: req(last_trans_w[r], 1)
        if k == "dma":
            req(last_salu_m0, 1)
        if k in ("salu", "branch"):
            for r in p.rd:
                if (r[0] == "s" and r != "scc") and r in last_valu_w: req(last_valu_w[r], 2)
        while need > 0:
            n = min(need, 16)
            emit(Inst("s_nop %d" % (n - 1)))
            need -= n
        t = state
        emit(p)
        for r in p.wr:
            last_valu_w.pop(r, None); last_trans_w.pop(r, None); last_mfma_w.pop(r, None); last_dot_w.pop(r, None)
        if isv:
            for r in p.wr: last_valu_w[r] = t
            if k == "trans":
                for r in p.wr: last_trans_w[r] = t
            if p.op.startswith("v_dot"):
                for r in p.wr: last_dot_w[r] = (t, p)
            if "exec" in p.wr: last_valu_exec = t
        if k == "mfma":
            for r in p.wr: last_mfma_w[r] = (t, p)
            for r in p.mc: last_mfma_c[r] = (t, p.passes)
        if k == "salu" and "m0" in p.wr: last_salu_m0 = t; m0w[0] = p
        if k == "dma" and p.m0s is not None: assert m0w[0] is p.m0s, ("m0 clobbered", p.text, p.tag, m0w[0].text)
        if k == "vst" and ("x4" in p.op or "x3" in p.op):
            data = regs_of(split_ops(p.text.split(None, 1)[1])[0 if p.op.startswith("buffer") else 1])
            for r in data: last_wide_st[r] = t
        if k in VM_KINDS:
            vm.append(p)
        if k in LG_KINDS:
            lg.append(p)
        if k == "smem": smem_out.append(p)
    lines = []
    for x in out:
        if x.kind == "label": lines.append(x.text)
        elif x.kind == "comment": lines.append(x.text if x.text.startswith(".") else "    " + x.text)
        else: lines.append("    " + x.text)
    return lines

def v(i, n=1): return "v%d" % i if n == 1 else "v[%d:%d]" % (i, i + n - 1)
def a(i, n=1): return "a%d" % i if n == 1 else "a[%d:%d]" % (i, i + n - 1)
def s(i, n=1): return "s%d" % i if n == 1 else "s[%d:%d]" % (i, i + n - 1)

class Prog(list):
    _uid = [0]
    def __init__(self, *a):
        super().__init__(*a); self.tail = []
    def i(self, text, tag=None):
        self.append(Inst(text, tag)); return self
    def c(self, text):
        self.append(Inst("; " + text))
    def label(self, name):
        self.append(Inst(name + ":"))
    def newlabel(self, base="L"):
        Prog._uid[0] += 1
        return "%s_%d" % (base, Prog._uid[0])
    def waitvm(self, tag): self.append(WaitVM(tag))
    def waitlg(self, tag): self.append(WaitLG(tag))
    def reset(self): self.append(Reset())

COST = {"dma": 16, "vld": 8, "vst": 12}
def cost_of(x):
    if isinstance(x, (list, tuple)):
        pk = [i for i, y in enumerate(x) if getattr(y, "op", "").startswith("v_pk_")]
        if pk: return max(20, cost_of(x[:pk[0]])) + 4 * (len(x) - pk[0])
        return sum(cost_of(y) for y in x)
    k = x.kind
    if k in COST: return COST[k]
    if k == "valu" and x.op.startswith("v_permlane") and COST.get("pl"): return 8
    if k in ("label", "comment", "pseudo_reset"): return 0
    if k == "trans": return 8
    if k == "dma": return 16
    if k == "vld": return 8
    if k == "vst": return 12
    if k == "dsw": return 8
    if k == "valu" and x.op.startswith("v_dot"): return 8
    if k == "valu" and x.op.startswith("v_pk_"): return 12
    return 4

def pipe_of(x):
    if isinstance(x, (list, tuple)): return sum(pipe_of(y) for y in x)
    k = x.kind
    if k not in VM_KINDS: return 0
    pc = getattr(x, "note", None)
    if isinstance(pc, int): return pc
    small = x.op.endswith("_dword") or x.op.endswith("_byte")
    if k == "vst": return 30 if small else (88 if "x2" in x.op else 120)
    return 26 if small else 71

def link_m0(groups):
    cur = None
    for g in groups:
        for x in g:
            if x.kind == "salu" and "m0" in x.wr: cur = x
            if x.kind == "dma": x.m0s = cur
    return groups

class Weave:
    def __init__(self, budget=24, pipe0=0, Q=24):
        self.mf = []; self.pre = {}; self.pin = {}; self.streams = []; self.budget = budget
        self.vs = []; self.pipe = pipe0; self.Q = Q
    def mfma(self, text):
        self.mf.append([Inst(t) for t in text] if isinstance(text, (list, tuple)) else Inst(text)); return len(self.mf) - 1
    def n(self): return len(self.mf)
    def addpre(self, g, *xs): self.pre.setdefault(g, []).extend(self._cv(x) for x in xs)
    def addpin(self, g, *xs): self.pin.setdefault(max(g, -1), []).extend(self._cv(x) for x in xs)
    def _cv(self, x):
        if isinstance(x, str): return Inst(x)
        if isinstance(x, (list, tuple)): return [self._cv(y) for y in x]
        return x
    def mk(self, items, earliest=0, deadline=10**9, every=0):
        st = []
        for i, it in enumerate(items):
            e = earliest + i * every
            if isinstance(it, tuple) and isinstance(it[0], int):
                e, it = max(e, it[0]), it[1]
            st.append([e, deadline, self._cv(it)])
        return st
    def stream(self, items, earliest=0, deadline=10**9, every=0, prio=False):
        self.chain([self.mk(items, earliest, deadline, every)], prio)
    def chain(self, parts, prio=False):
        st = [x for p in parts for x in p]
        for i in range(len(st) - 2, -1, -1): st[i][1] = min(st[i][1], st[i + 1][1])
        for x in st: assert x[0] <= x[1], ("earliest after deadline", x[0], x[1], getattr(x[2], "text", x[2]))
        if prio: self.streams.insert(0, st)
        else: self.streams.append(st)
        return st
    def vstream(self, items, earliest=0, deadline=10**9, name="", soft=False, div=32.0):
        st = []
        for it in items:
            if isinstance(it, tuple) and isinstance(it[0], int): e, d, x = it
            else: e, d, x = earliest, deadline, it
            st.append([max(e, earliest), min(d, deadline), self._cv(x), name, soft])
        for i in range(len(st) - 2, -1, -1):
            st[i][1] = min(st[i][1], st[i + 1][1] - pipe_of(st[i + 1][2]) / div)
        for i in range(1, len(st)): st[i][0] = max(st[i][0], st[i - 1][0])
        self.vs.append(st)
        return st
    def emit(self, P, flushv=True, verbose=True, keep=None):
        now = [0]
        def put(x):
            if isinstance(x, list):
                for y in x: put(y)
            else:
                P.append(x)
                pc = pipe_of(x)
                if pc: self.pipe = max(self.pipe, now[0]) + pc
        for x in self.pin.get(-1, []): put(x)
        N = len(self.mf)
        self.over = 0
        self.log = {}
        forced = 0; back = 0
        for g in range(N):
            now[0] = g * 32 + self.over
            for x in self.pre.get(g, []): put(x)
            pair = isinstance(self.mf[g], list)
            pins = list(self.pin.get(g, []))
            for h, m in enumerate(self.mf[g] if pair else [self.mf[g]]):
                P.append(m)
                fin = h == 1 or not pair
                B = self.budget // 2 if pair else self.budget
                left = B - (cost_of(self.pre.get(g + 1, [])) if fin else 0)
                while pins and (fin or left == B or cost_of(pins[0]) <= left):
                    left -= cost_of(pins[0]); put(pins.pop(0))
                big = B if pair else B - 8
                while not pins:
                    c_ = [q for q in self.vs if q and q[0][0] <= g]
                    if not c_: break
                    hard = [q for q in c_ if q[0][1] <= g and not q[0][4]]
                    q = min(hard or c_, key=lambda q: q[0][1])
                    force = q[0][1] <= g and not q[0][4]
                    c = cost_of(q[0][2])
                    ok = c <= left or left >= (B if pair else B - 12)
                    if (force and (fin or ok)) or (self.pipe <= now[0] + self.Q and ok):
                        if force and self.pipe > now[0] + self.Q: forced += 1
                        it = q.pop(0)
                        self.log.setdefault(it[3], []).append(g)
                        put(it[2]); left -= c
                    else: break
                for q in self.streams:
                    while q and q[0][0] <= g and not pins:
                        c = cost_of(q[0][2])
                        if (q[0][1] <= g and fin) or c <= left or (c > big and left >= big):
                            put(q.pop(0)[2]); left -= c
                        else: break
                if pair: left += 8 - B
                if left < 0: self.over -= left
            back = max(back, self.pipe - now[0])
        now[0] = N * 32 + self.over
        for x in self.pre.get(N, []): put(x)
        self.carry = []
        for q in self.streams:
            if q is keep: self.carry = [[max(e - N, 0), d - N, x] for e, d, x in q]; continue
            for e, d, x in q: put(x); self.over += cost_of(x)
        rest = []
        for q in self.vs:
            if flushv:
                for it in q: put(it[2]); self.log.setdefault(it[3], []).append(N)
            elif q:
                rest.append([[it[0] - N, it[1] - N] + it[2:] for it in q])
        self.pipe_left = max(0, self.pipe - now[0])
        if verbose:
            print("weave n=%d over=%d forced=%d maxback=%d pipeleft=%d | %s" % (N, self.over, forced, back, self.pipe_left,
                  " ".join("%s:%d-%d" % (k, v_[0], v_[-1]) for k, v_ in self.log.items())))
        return rest

import subprocess, tempfile, os
def inst_sizes(lines):
    src = []
    idx = []
    for i, l in enumerate(lines):
        t = l.strip()
        if not t or t.startswith(";") or t.startswith(".") or t.endswith(":"): continue
        op = t.split()[0]
        if op.startswith("s_cbranch") or op == "s_branch": t = op + " 0"
        elif re.search(r"\bL[A-Za-z_]\w*|_kernel", t): t = re.sub(r",[^,]*$", ", 0x12345678", t)
        src.append(t); idx.append(i)
    r = subprocess.run(["llvm-mc", "-triple=amdgcn-amd-amdhsa", "-mcpu=gfx950", "-show-encoding"],
                       input="\n".join(src) + "\n", capture_output=True, text=True)
    if r.returncode != 0:
        print(r.stderr[:3000]); raise SystemExit(1)
    enc = re.findall(r"encoding: \[([^\]]*)\]", r.stdout)
    assert len(enc) == len(src), (len(enc), len(src))
    sz = [0] * len(lines)
    for i, e in zip(idx, enc): sz[i] = len(e.split(","))
    return sz

NO_E64 = ("v_readfirstlane", "v_permlane", "v_nop", "v_fmaak", "v_fmamk", "v_madak", "v_madmk", "v_accvgpr", "v_dot2c")
def align8(lines, mode=2):
    sz = inst_sizes(lines)
    out = []; osz = []
    off = 0
    npad = nprom = 0
    for l, n in zip(lines, sz):
        if l.endswith(":") and off % 8 == 4 and not l.startswith(" ") and not l.startswith("Lpc"):
            n_next = 8
        else:
            n_next = n
        if n_next >= 8 and off % 8 == 4 and mode:
            k = len(out) - 1
            done = False
            while k >= 0 and osz[k] in (0, 4):
                if osz[k] == 4:
                    t = out[k].strip(); op = t.split()[0]
                    if op.startswith("v_") and not op.endswith("_e64") and not op.startswith(NO_E64) and "dpp" not in t:
                        o2 = off - sum(osz[k:])
                        if o2 % 8 == 0:
                            op2 = (op[:-4] if op.endswith("_e32") else op) + "_e64"
                            out[k] = "    " + op2 + t[len(op):]; osz[k] = 8; off += 4; done = True; nprom += 1
                            break
                k -= 1
            if not done and mode == 2:
                out.append("    s_nop 0"); osz.append(4); off += 4; npad += 1
        out.append(l); osz.append(n); off += n
    return out, off, npad, nprom

def kernel_text(name, prog, align=True, mode=2):
    L = [".text", ".globl %s" % name, ".p2align 8", ".type %s,@function" % name, "%s:" % name]
    body = finalize(prog)
    for t in getattr(prog, "tail", []):
        body += finalize(t)
    if align:
        body, nb, npad, nprom = align8(body, mode)
        print("%s: %d bytes, %d pads, %d promoted" % (name[-24:], nb, npad, nprom))
    return L + body

def kernel_desc(name, vgpr, sgpr, accum_offset, kernarg=80):
    return ['.section .rodata,"a"', ".p2align 6", ".amdhsa_kernel %s" % name,
            "  .amdhsa_next_free_vgpr %d" % vgpr, "  .amdhsa_next_free_sgpr %d" % sgpr,
            "  .amdhsa_accum_offset %d" % accum_offset, "  .amdhsa_group_segment_fixed_size 0",
            "  .amdhsa_kernarg_size %d" % kernarg, "  .amdhsa_user_sgpr_count 2",
            "  .amdhsa_user_sgpr_kernarg_segment_ptr 1", "  .amdhsa_system_sgpr_workgroup_id_x 1",
            ".end_amdhsa_kernel"]
```

```python
KB = 1024
W1_OFF = 0x000000
W1C_OFF = 0x150000
F1_OFF = 0x720000
F2_OFF = 0x730000
F0_OFF = 0x740000
W1P_OFF = 0x390000
W2_OFF = 0x160000
W3C_OFF = 0x1D0000
W4_OFF = 0x200000
W3_OFF = 0x400000
GRP_OFF = 0x800000
GRP_SZ = 0x200000
G_ST1_0 = 0x00000
G_ST2_0 = 0x04000
G_ST1_1 = 0x08000
G_FL = 0x0C000
G_XH = 0x10000
G_XHST = 0x17000
G_H = 0x20000
SL_X2, SL_O, SL_X1 = 0, 2, 5
G_X0 = 0x100000
G_CS1 = 0x120000
G_ST0 = 0x11C000
WS_BYTES = 268435456
NAME = "interleave_layers__sliding_local_dilated__swiglu_ffn__prompt"

STAMP_OFF = 0x3000000
```

```python
import sys, io, contextlib
from build import build
name = sys.argv[1]
opts = {}
for a_ in sys.argv[2:]:
    k, v_ = a_.split("="); opts[k] = int(v_)
build("dev/%s.s" % name, 99, opts=dict(opts))
with contextlib.redirect_stdout(io.StringIO()):
    build("dev/%ss.s" % name, 99, stamps=True, opts=dict(opts))
```
